```python
import torch

def _softmax(x, axis=-1):
    return torch.softmax(x, dim=axis)

def _gelu(x):
    return torch.nn.functional.gelu(x, approximate='tanh')

def _silu(x):
    return torch.nn.functional.silu(x)

def _sigmoid(x):
    return torch.sigmoid(x)

def _layernorm(x, axis=-1, eps=1e-05):
    m = x.mean(dim=axis, keepdim=True)
    v = x.var(dim=axis, keepdim=True, unbiased=False)
    return (x - m) / torch.sqrt(v + eps)

def _scatter_add(tgt, idx, src, axis=0):
    return tgt.clone().index_add_(axis, idx, src)

def _segment_sum(src, seg, n):
    out = torch.zeros((n,) + src.shape[1:], dtype=src.dtype)
    return out.index_add_(0, seg, src)

def _pad(x, pw):
    flat = tuple((v for pair in reversed(pw) for v in pair))
    return torch.nn.functional.pad(x, flat)
kernel_name = 'adaLN_cond__memory_aug_recurrent_mem_tr__mixer_gmlp__prompt'

def setup_inputs():

    _w = lambda a: (lambda t: t.to(torch.bfloat16) if t.is_floating_point() else t)(torch.as_tensor(a))

    def _A_setup():
        B, S, Dm = (1, 2048, 576)
        H, Dh = (32, 128)
        M, seg = (8, 32)
        seg = min(seg, S)
        S = S // seg * seg
        return {'x': _w((lambda *s: torch.randn(*s, dtype=torch.bfloat16) * 0.05)(B, S, Dm)), 'mem0': _w((lambda *s: torch.randn(*s, dtype=torch.bfloat16) * 0.4)(B, M, Dm)), 'Wq': _w((lambda *s: torch.randn(*s, dtype=torch.bfloat16) * 3.2)(Dm, H, Dh) * Dm ** (-0.5)), 'Wk': _w((lambda *s: torch.randn(*s, dtype=torch.bfloat16) * 3.2)(Dm, H, Dh) * Dm ** (-0.5)), 'Wv': _w((lambda *s: torch.randn(*s, dtype=torch.bfloat16) * 0.4)(Dm, H, Dh) * Dm ** (-0.5)), 'Wo': _w((lambda *s: torch.randn(*s, dtype=torch.bfloat16) * 0.4)(H, Dh, Dm) * (H * Dh) ** (-0.5)), 'seg_len': seg}
    _A_in = _A_setup()

    def _B_setup():
        B, S, D, F = (1, 2048, 576, 4608)
        Fh = F // 2
        return {'x': _w((lambda *s: torch.randn(*s, dtype=torch.bfloat16) * 0.05)(B, S, D)), 'w_in': _w((lambda *s: torch.randn(*s, dtype=torch.bfloat16) * 0.8)(D, 2 * Fh)), 'w_sp': _w(0.01 * (lambda *s: torch.randn(*s, dtype=torch.bfloat16) * 0.8)(S, S)), 'b_sp': _w(1.0 + 0.01 * (lambda *s: torch.randn(*s, dtype=torch.bfloat16) * 0.05)(S)), 'w_out': _w((lambda *s: torch.randn(*s, dtype=torch.bfloat16) * 0.05)(Fh, D))}
    _B_in = _B_setup()
    return {'A_x': _A_in['x'], 'A_mem0': _A_in['mem0'], 'A_Wq': _A_in['Wq'], 'A_Wk': _A_in['Wk'], 'A_Wv': _A_in['Wv'], 'A_Wo': _A_in['Wo'], 'A_seg_len': _A_in['seg_len'], 'B_x': _B_in['x'], 'B_w_in': _B_in['w_in'], 'B_w_sp': _B_in['w_sp'], 'B_b_sp': _B_in['b_sp'], 'B_w_out': _B_in['w_out'], 'c': _w((lambda *s: torch.randn(*s, dtype=torch.bfloat16) * 0.1)(1, 576) * 8.0), 'w_mod': _w((lambda *s: torch.randn(*s, dtype=torch.bfloat16) * 0.1)(576, 6 * 576) * 576 ** (-0.5) * 8.0)}

def reference(A_x, A_mem0, A_Wq, A_Wk, A_Wv, A_Wo, A_seg_len, B_x, B_w_in, B_w_sp, B_b_sp, B_w_out, c, w_mod):

    def _A_ref(x, mem0, Wq, Wk, Wv, Wo, seg_len):
        B, S, Dm = x.shape
        H, Dh = (Wq.shape[1], Wq.shape[2])
        M = mem0.shape[1]
        scale = Dh ** (-0.5)
        n_seg = S // seg_len
        L = M + seg_len
        idx = torch.arange(L)
        mask = (idx[:, None] < M) | (idx[:, None] >= idx[None, :])
        mem = mem0
        outs = []
        for s in range(n_seg):
            xs = x[:, s * seg_len:(s + 1) * seg_len, :].clone()
            h = torch.concatenate([mem, xs], axis=1)
            q = torch.einsum('btd,dhe->bhte', h, Wq)
            k = torch.einsum('btd,dhe->bhte', h, Wk)
            v = torch.einsum('btd,dhe->bhte', h, Wv)
            scores = torch.einsum('bhqe,bhke->bhqk', q, k) * scale
            scores = torch.where(mask[None, None], scores, -1000000000.0)
            p = _softmax(scores, axis=-1)
            o = torch.einsum('bhqk,bhke->bhqe', p, v)
            o = torch.einsum('bhte,hed->btd', o, Wo)
            mem = o[:, :M, :].clone()
            outs.append(o[:, M:, :])
        return torch.concatenate(outs, axis=1)

    def _B_ref(x, w_in, w_sp, b_sp, w_out):
        B, S, D = x.shape
        F = w_in.shape[-1]
        Fh = F // 2
        z = _gelu(torch.einsum('bsd,df->bsf', x, w_in))
        z1 = z[..., :Fh].clone()
        z2 = _layernorm(z[..., Fh:], axis=-1)
        g = torch.einsum('ts,bsf->btf', w_sp, z2) + b_sp[None, :, None]
        return torch.einsum('bsf,fd->bsd', z1 * g, w_out)
    x = A_x
    mod = (_silu(c) @ w_mod).reshape(c.shape[0], 6, 1, -1)
    sa, ca, ga, sb, cb, gb = (mod[:, 0].clone(), mod[:, 1].clone(), mod[:, 2].clone(), mod[:, 3].clone(), mod[:, 4].clone(), mod[:, 5].clone())
    h = _layernorm(x, axis=-1) * (1 + ca) + sa
    x = x + ga * _A_ref(h, A_mem0, A_Wq, A_Wk, A_Wv, A_Wo, A_seg_len)
    h = _layernorm(x, axis=-1) * (1 + cb) + sb
    x = x + gb * _B_ref(h, B_w_in, B_w_sp, B_b_sp, B_w_out)
    return x
```

```python
KNAME = 'adaLN_cond__memory_aug_recurrent_mem_tr__mixer_gmlp__prompt'

KA = dict(x=0, mem0=8, wq=16, wk=24, wv=32, wo=40, seglen=48, bx=56, w_in=64, w_sp=72, b_sp=80,
          w_out=88, c=96, w_mod=104, out=112, dbg=120, ws=128)

S, D = 2048, 576
H, DH = 32, 128
HD = H * DH
F, FH = 4608, 2304
NSEG, SEG, MEM = 64, 32, 8

class WS: pass
_off = 0
def _alloc(name, nbytes, align=4096):
    global _off
    _off = (_off + align - 1) // align * align
    setattr(WS, name, _off); setattr(WS, name + '_SZ', nbytes)
    _off += nbytes
_alloc('FLAGS', 65536)
_alloc('MODB', 6 * D * 2)
_alloc('H1', S * D * 2)
_alloc('Q', S * HD * 2)
_alloc('K', S * HD * 2)
_alloc('VT', NSEG * H * DH * SEG * 2)
_alloc('KM', NSEG * H * MEM * DH * 2)
_alloc('VMT', NSEG * H * DH * MEM * 2)
_alloc('O', S * HD * 2)
_alloc('X1', S * D * 2)
_alloc('H2', S * D * 2)
_alloc('Z1', S * FH * 2)
_alloc('Z2', S * FH * 2)
_alloc('Z2N', S * FH * 2)
_alloc('Y', S * FH * 2)
_alloc('PBUF', 2 * H * MEM * D * 4)
_alloc('MX', 4 * MEM * D * 2)
_alloc('MH', (NSEG + 1) * MEM * D * 2)
WS.TOTAL = _off

class Asm:
    def __init__(self):
        self.lines = []
        self.uid = 0
    def __call__(self, s):
        for ln in s.strip('\n').split('\n'):
            ln = ln.strip()
            if ln: self.lines.append('  ' + ln)
    def label(self, name): self.lines.append(name + ':')
    def raw(self, s): self.lines.append(s)
    def newlabel(self, p='L'):
        self.uid += 1
        return '%s_%d' % (p, self.uid)
    def text(self): return '\n'.join(self.lines) + '\n'

def vr(n, cnt=1):
    return 'v%d' % n if cnt == 1 else 'v[%d:%d]' % (n, n + cnt - 1)
def ar(n, cnt=1):
    return 'a%d' % n if cnt == 1 else 'a[%d:%d]' % (n, n + cnt - 1)
def sr(n, cnt=1):
    return 's%d' % n if cnt == 1 else 's[%d:%d]' % (n, n + cnt - 1)
def reg(kind, n, cnt=1):
    return {'v': vr, 'a': ar, 's': sr}[kind](n, cnt)

def kernel_begin(a, name):
    a.raw('.text')
    a.raw('.globl %s' % name)
    a.raw('.p2align 8')
    a.raw('.type %s,@function' % name)
    a.label(name)

def kernel_desc(name, vgpr, sgpr=102, accum=None):
    if accum is None: accum = (min(vgpr, 256) + 3) // 4 * 4
    return '''.section .rodata,"a"
.p2align 6
.amdhsa_kernel %s
  .amdhsa_next_free_vgpr %d
  .amdhsa_next_free_sgpr %d
  .amdhsa_accum_offset %d
  .amdhsa_group_segment_fixed_size 0
  .amdhsa_kernarg_size 136
  .amdhsa_user_sgpr_count 2
  .amdhsa_user_sgpr_kernarg_segment_ptr 1
  .amdhsa_system_sgpr_workgroup_id_x 1
  .amdhsa_float_denorm_mode_32 3
  .amdhsa_float_denorm_mode_16_64 3
.end_amdhsa_kernel
.text
''' % (name, vgpr, sgpr, accum)

def load_ptr(a, sdst, key):
    a('s_load_dwordx2 %s, s[0:1], %d' % (sr(sdst, 2), KA[key]))

def make_srd(a, sd, sbase, off, size):
    if off:
        a('s_add_u32 s%d, s%d, 0x%x' % (sd, sbase, off))
        a('s_addc_u32 s%d, s%d, 0' % (sd + 1, sbase + 1))
    else:
        a('s_mov_b32 s%d, s%d' % (sd, sbase))
        a('s_mov_b32 s%d, s%d' % (sd + 1, sbase + 1))
    a('s_mov_b32 s%d, 0x%x' % (sd + 2, size))
    a('s_mov_b32 s%d, 0x20000' % (sd + 3))

def round_bf16(a, v, tmp):
    a('v_cvt_pk_bf16_f32 v%d, v%d, v%d' % (tmp, v, v))
    a('v_lshlrev_b32 v%d, 16, v%d' % (v, tmp))

def round2_bf16(a, v0, v1, tmp):
    a('v_cvt_pk_bf16_f32 v%d, v%d, v%d' % (tmp, v0, v1))
    a('v_lshlrev_b32 v%d, 16, v%d' % (v0, tmp))
    a('v_and_b32 v%d, 0xffff0000, v%d' % (v1, tmp))

def unpack2(a, lo, hi, src):
    a('v_lshlrev_b32 v%d, 16, v%d' % (lo, src))
    a('v_and_b32 v%d, 0xffff0000, v%d' % (hi, src))
```

```python
from asmlib import *
from k_small import f2u, LOG2E
from k_gemms import wave_id, swap_pair, lane_T_offsets

SCALE = 128 ** -0.5

def xor_reduce_rows(a, v, t, op):
    ins = {'add': 'v_add_f32', 'max': 'v_max_f32'}[op]
    for sw in ('v_permlane16_swap_b32', 'v_permlane32_swap_b32'):
        a('v_mov_b32 v%d, v%d' % (t, v))
        a('s_nop 1')
        a('%s v%d, v%d' % (sw, v, t))
        a('s_nop 0')
        a('%s v%d, v%d, v%d' % (ins, v, v, t))

def attn_body(a):
    Q, K, KM, VT, VM = 16, 48, 80, 96, 128
    SC = 144
    OA = 176
    a('v_and_b32 v2, 15, v1')
    a('v_lshrrev_b32 v3, 4, v1')
    a('v_lshlrev_b32 v4, 13, v2')
    a('v_lshl_add_u32 v4, v3, 4, v4')
    a('v_add_u32 v5, 0x20000, v4')
    a('v_and_b32 v6, 7, v1')
    a('v_lshlrev_b32 v6, 8, v6')
    a('v_lshl_add_u32 v6, v3, 4, v6')
    a('v_lshlrev_b32 v7, 6, v2')
    a('v_lshl_add_u32 v7, v3, 4, v7')
    a('v_and_b32 v8, 1, v3')
    a('v_lshlrev_b32 v8, 3, v8')
    a('v_lshl_add_u32 v8, v2, 4, v8')
    a('s_lshl_b32 s34, s30, 18')
    a('s_lshl_b32 s35, s31, 8')
    a('s_add_u32 s34, s34, s35')
    a('s_lshl_b32 s35, s30, 5')
    a('s_add_u32 s35, s35, s31')
    a('s_lshl_b32 s36, s35, 11')
    a('s_lshl_b32 s37, s35, 13')
    a('s_add_u32 s38, s37, 4096')
    for t in range(2):
        for kk in range(4):
            a('buffer_load_dwordx4 v[%d:%d], v%d, s[12:15], s34 offen offset:%d' % (Q + 16 * t + 4 * kk, Q + 16 * t + 4 * kk + 3, 4 + t, 64 * kk))
    for kk in range(4):
        a('buffer_load_dwordx4 v[%d:%d], v6, s[24:27], s36 offen offset:%d' % (KM + 4 * kk, KM + 4 * kk + 3, 64 * kk))
    for t in range(2):
        for kk in range(4):
            a('buffer_load_dwordx4 v[%d:%d], v%d, s[16:19], s34 offen offset:%d' % (K + 16 * t + 4 * kk, K + 16 * t + 4 * kk + 3, 4 + t, 64 * kk))
    for ft in range(8):
        a('buffer_load_dwordx4 v[%d:%d], v7, s[20:23], s%d offen offset:%d' % (VT + 4 * ft, VT + 4 * ft + 3, 37 + (ft >> 2), 1024 * (ft & 3)))
    for ft in range(8):
        a('buffer_load_dwordx2 v[%d:%d], v8, s[52:55], s36 offen offset:%d' % (VM + 2 * ft, VM + 2 * ft + 1, 256 * ft))
    a('v_lshlrev_b32 v9, 2, v3')
    for r in range(4):
        a('v_add_u32 v10, %d, v9' % r)
        a('v_cmp_le_u32 s[%d:%d], v10, v2' % (60 + 2 * r, 61 + 2 * r))
    a('v_cmp_gt_u32 s[68:69], 2, v3')
    a('v_mov_b32 v11, 0xff800000')
    a('s_mov_b32 s70, 0x%x' % f2u(SCALE))
    a('s_mov_b32 s71, 0x%x' % f2u(LOG2E))
    lane_T_offsets(a, 12, HD * 2, 13)
    a('v_add_u32 v13, 0x20000, v12')
    for qt in range(2):
        nt = 2 + qt
        if qt == 0: a('s_waitcnt vmcnt(16)')
        for kk in range(4):
            srcs = [KM, K] + ([K + 16] if qt else [])
            for ti, sb in enumerate(srcs):
                c = SC + 4 * ti
                a('v_mfma_f32_16x16x32_bf16 v[%d:%d], v[%d:%d], v[%d:%d], %s' % (c, c + 3, sb + 4 * kk, sb + 4 * kk + 3,
                  Q + 16 * qt + 4 * kk, Q + 16 * qt + 4 * kk + 3, '0' if kk == 0 else 'v[%d:%d]' % (c, c + 3)))
        a('s_nop 7')
        n = 4 * nt
        T = SC + 12
        for i in range(0, n, 2): round2_bf16(a, SC + i, SC + i + 1, T)
        for i in range(n): a('v_mul_f32 v%d, s70, v%d' % (SC + i, SC + i))
        for i in range(0, n, 2): round2_bf16(a, SC + i, SC + i + 1, T)
        for r in range(4):
            a('v_cndmask_b32 v%d, v11, v%d, s[68:69]' % (SC + r, SC + r))
            d = SC + 4 * (1 + qt) + r
            a('v_cndmask_b32 v%d, v11, v%d, s[%d:%d]' % (d, d, 60 + 2 * r, 61 + 2 * r))
        a('v_max3_f32 v%d, v%d, v%d, v%d' % (T, SC, SC + 1, SC + 2))
        for i in range(3, n - 1, 2): a('v_max3_f32 v%d, v%d, v%d, v%d' % (T, T, SC + i, SC + i + 1))
        a('v_max_f32 v%d, v%d, v%d' % (T, T, SC + n - 1))
        xor_reduce_rows(a, T, T + 1, 'max')
        a('v_mul_f32 v%d, s71, v%d' % (T, T))
        for i in range(n):
            a('v_fma_f32 v%d, v%d, s71, -v%d' % (SC + i, SC + i, T))
        for i in range(n):
            a('v_exp_f32 v%d, v%d' % (SC + i, SC + i))
        a('s_nop 0')
        a('v_add_f32 v%d, v%d, v%d' % (T, SC, SC + 1))
        for i in range(2, n): a('v_add_f32 v%d, v%d, v%d' % (T, T, SC + i))
        xor_reduce_rows(a, T, T + 1, 'add')
        a('v_rcp_f32 v%d, v%d' % (T, T))
        a('s_nop 0')
        for i in range(n): a('v_mul_f32 v%d, v%d, v%d' % (SC + i, SC + i, T))
        PM, PT = T + 2, T + 4
        assert PM % 2 == 0
        a('v_cvt_pk_bf16_f32 v%d, v%d, v%d' % (PM, SC, SC + 1))
        a('v_cvt_pk_bf16_f32 v%d, v%d, v%d' % (PM + 1, SC + 2, SC + 3))
        a('v_cvt_pk_bf16_f32 v%d, v%d, v%d' % (PT, SC + 4, SC + 5))
        a('v_cvt_pk_bf16_f32 v%d, v%d, v%d' % (PT + 1, SC + 6, SC + 7))
        if qt:
            a('v_cvt_pk_bf16_f32 v%d, v%d, v%d' % (PT + 2, SC + 8, SC + 9))
            a('v_cvt_pk_bf16_f32 v%d, v%d, v%d' % (PT + 3, SC + 10, SC + 11))
        else:
            a('v_mov_b32 v%d, 0' % (PT + 2)); a('v_mov_b32 v%d, 0' % (PT + 3))
        if qt == 0: a('s_waitcnt vmcnt(0)')
        a('s_nop 1')
        for ft in range(8):
            c = OA + 4 * ft
            a('v_mfma_f32_16x16x16_bf16 v[%d:%d], v[%d:%d], v[%d:%d], 0' % (c, c + 3, VM + 2 * ft, VM + 2 * ft + 1, PM, PM + 1))
        for ft in range(8):
            c = OA + 4 * ft
            a('v_mfma_f32_16x16x32_bf16 v[%d:%d], v[%d:%d], v[%d:%d], v[%d:%d]' % (c, c + 3, VT + 4 * ft, VT + 4 * ft + 3, PT, PT + 3, c, c + 3))
        a('s_nop 7')
        for p in range(4):
            R = 208 + 4 * p + 16 * qt
            for k in range(2):
                b = OA + 4 * (2 * p + k)
                a('v_cvt_pk_bf16_f32 v%d, v%d, v%d' % (R + 2 * k, b, b + 1))
                a('v_cvt_pk_bf16_f32 v%d, v%d, v%d' % (R + 2 * k + 1, b + 2, b + 3))
            swap_pair(a, R)
            a('buffer_store_dwordx4 v[%d:%d], v%d, s[56:59], s34 offen offset:%d' % (R, R + 3, 12 + qt, 64 * p))

def gen_attn(a, name='attn_kernel'):
    kernel_begin(a, name)
    done = a.newlabel('Lattn_done')
    a('s_cmp_ge_u32 s2, 512')
    a('s_cbranch_scc1 %s' % done)
    load_ptr(a, 10, 'ws')
    wave_id(a, 3)
    a('v_and_b32 v1, 63, v0')
    a('s_lshl_b32 s30, s2, 2')
    a('s_add_u32 s30, s30, s3')
    a('s_and_b32 s31, s30, 31')
    a('s_lshr_b32 s30, s30, 5')
    a('s_waitcnt lgkmcnt(0)')
    make_srd(a, 12, 10, WS.Q, WS.Q_SZ)
    make_srd(a, 16, 10, WS.K, WS.K_SZ)
    make_srd(a, 20, 10, WS.VT, WS.VT_SZ)
    make_srd(a, 24, 10, WS.KM, WS.KM_SZ)
    make_srd(a, 52, 10, WS.VMT, WS.VMT_SZ)
    make_srd(a, 56, 10, WS.O, WS.O_SZ)
    attn_body(a)
    a.label(done)
    a('s_endpgm')
    return kernel_desc(name, 256, 80, 256), '; @launch kernel=%s grid=(512,1,1) block=(256,1,1) lds=0' % name
```

```python
from asmlib import *
from k_small import f2u, LOG2E
from k_gemms import wave_id

SCALE = 128 ** -0.5
WOI = 0
MT = 147456
QT = MT + 9216
KT = QT + 2048
SX = KT + 2048
OT = SX + 1024
LDS_TOTAL = OT + 2048
assert LDS_TOTAL == 163840
PSTRIDE = 576 * 32
PBUFSZ = 32 * PSTRIDE

vAM, vAQ, vWQ, vIDX, vWO, vGK, vGV, vGVM, vGP, vGR, vGMX, vGMS, vWS, vRS = range(1, 15)
ACC = 16
VT0, MA0, VT1, MA1, MA2 = 40, 44, 48, 52, 56
KTR = 60
TMP = 76
MAS = [MA0, MA1, MA2]

def wreg(mat, kk, t):
    L = ((mat * 9 + kk) * 2 + t) * 8
    return ('a', L) if L < 256 else ('v', 80 + L - 256)

def smf(a, acc, A, B, Bkind='v'):
    a('v_smfmac_f32_16x16x64_bf16 v[%d:%d], v[%d:%d], %s, v%d' % (acc, acc + 3, A, A + 3, reg(Bkind, B, 8), vIDX))

def pair_sum(a, T0, T1):
    for r in range(4): a('v_permlane32_swap_b32 v%d, v%d' % (T0 + r, T1 + r))
    a('s_nop 0')
    for r in range(4): a('v_add_f32 v%d, v%d, v%d' % (T0 + r, T0 + r, T1 + r))

class LgkmQ:
    def __init__(self, a): self.a = a; self.q = []
    def issue(self, tag, text): self.a(text); self.q.append(tag)
    def wait(self, tag):
        if tag not in self.q: return
        idx = max(i for i, t in enumerate(self.q) if t == tag)
        n = len(self.q) - 1 - idx
        self.a('s_waitcnt lgkmcnt(%d)' % min(n, 15))
        self.q = self.q[idx + 1:]
    def wait_all(self):
        self.a('s_waitcnt lgkmcnt(0)'); self.q = []

class Chain:
    def __init__(self, fast):
        self.fast = fast
        self.st = '' if fast else ' sc1'

    def prologue_addrs(self, a):
        a('v_and_b32 v76, 63, v0')
        L = 76
        g, j, r, c = 77, 78, 79, 16
        a('v_lshrrev_b32 v%d, 4, v%d' % (g, L))
        a('v_and_b32 v%d, 15, v%d' % (j, L))
        a('v_bfe_u32 v%d, v%d, 2, 2' % (r, L))
        a('v_and_b32 v%d, 3, v%d' % (c, L))
        t0, t1 = 17, 18
        a('v_lshlrev_b32 v%d, 4, v%d' % (t0, g))
        a('v_lshrrev_b32 v%d, 1, v%d' % (t1, r))
        a('v_lshl_add_u32 v%d, v%d, 2, v%d' % (t0, t1, t0))
        a('v_lshrrev_b32 v%d, 1, v%d' % (t1, c))
        a('v_lshl_add_u32 v%d, v%d, 1, v%d' % (t0, t1, t0))
        a('v_and_b32 v%d, 1, v%d' % (t1, r))
        a('v_add_u32 v%d, v%d, v%d' % (t0, t0, t1))
        a('v_lshlrev_b32 v%d, 4, v%d' % (t0, t0))
        a('v_and_b32 v%d, 1, v%d' % (t1, c))
        a('v_lshl_add_u32 v%d, v%d, 3, v%d' % (t0, t1, t0))
        a('v_add_u32 v%d, %d, v%d' % (vAM, MT, t0))
        a('v_lshl_add_u32 v%d, v%d, 3, v%d' % (t0, g, r))
        a('v_lshlrev_b32 v%d, 4, v%d' % (t0, t0))
        a('v_lshl_add_u32 v%d, v%d, 3, v%d' % (t0, t1, t0))
        a('v_add_u32 v%d, %d, v%d' % (vAQ, QT, t0))
        a('v_lshrrev_b32 v%d, 1, v%d' % (t0, g))
        a('v_lshl_add_u32 v%d, v%d, 4, v%d' % (t0, t0, j))
        a('s_lshl_b32 s20, s3, 5')
        a('v_add_u32 v%d, s20, v%d' % (t0, t0))
        a('v_and_b32 v%d, 1, v%d' % (t1, g))
        a('v_lshlrev_b32 v%d, 4, v%d' % (vWQ, t0))
        a('v_lshl_add_u32 v%d, v%d, 3, v%d' % (vWQ, t1, vWQ))
        a('v_add_u32 v%d, %d, v%d' % (vWQ, QT, vWQ))
        a('v_and_b32 v%d, 8, v%d' % (t0, L))
        a('v_cmp_eq_u32 vcc, 0, v%d' % t0)
        a('v_mov_b32 v%d, 0xeeeeeeee' % t0)
        a('v_mov_b32 v%d, 0x44444444' % vIDX)
        a('v_cndmask_b32 v%d, v%d, v%d, vcc' % (vIDX, t0, vIDX))
        a('s_mul_i32 s20, s3, 9216')
        a('v_lshlrev_b32 v%d, 4, v%d' % (t0, L))
        a('v_add_u32 v%d, s20, v%d' % (vWO, t0))
        a('v_bfe_u32 v%d, v%d, 1, 2' % (t0, j))
        a('v_lshlrev_b32 v%d, 2, v%d' % (t0, t0))
        a('v_lshrrev_b32 v%d, 3, v%d' % (t1, j))
        a('v_lshl_add_u32 v%d, v%d, 1, v%d' % (t0, t1, t0))
        a('v_and_b32 v%d, 1, v%d' % (t1, j))
        a('v_add_u32 v%d, v%d, v%d' % (t0, t0, t1))
        a('s_and_b32 s20, s3, 1')
        a('s_lshl_b32 s20, s20, 4')
        a('v_add_u32 v%d, s20, v%d' % (t0, t0))
        a('v_lshrrev_b32 v%d, 3, v%d' % (t1, t0))
        a('v_lshlrev_b32 v%d, 2, v%d' % (t1, t1))
        a('v_and_b32 v19, 3, v%d' % t0)
        a('v_add_u32 v%d, v%d, v19' % (t1, t1))
        a('v_bfe_u32 v19, v%d, 2, 1' % t0)
        a('v_lshl_add_u32 v%d, v19, 4, v%d' % (t1, t1))
        a('v_lshlrev_b32 v%d, 13, v%d' % (t1, t1))
        a('v_lshl_add_u32 v%d, v%d, 4, v%d' % (t1, g, t1))
        a('v_and_b32 v%d, 7, v%d' % (t0, L))
        a('v_lshlrev_b32 v%d, 8, v%d' % (t0, t0))
        a('v_lshl_add_u32 v%d, v%d, 4, v%d' % (t0, g, t0))
        a('s_cmp_eq_u32 s3, 2')
        a('s_cselect_b64 vcc, -1, 0')
        a('v_cndmask_b32 v%d, v%d, v%d, vcc' % (vGK, t1, t0))
        a('s_lshl_b32 s20, s3, 5')
        a('v_add_u32 v%d, s20, v%d' % (t0, j))
        a('v_lshlrev_b32 v%d, 6, v%d' % (vGV, t0))
        a('v_lshl_add_u32 v%d, v%d, 4, v%d' % (vGV, g, vGV))
        a('v_lshlrev_b32 v%d, 4, v%d' % (vGVM, t0))
        a('v_and_b32 v%d, 1, v%d' % (t1, g))
        a('v_lshl_add_u32 v%d, v%d, 3, v%d' % (vGVM, t1, vGVM))
        a('v_lshrrev_b32 v%d, 1, v%d' % (t1, g))
        a('v_lshl_add_u32 v%d, v%d, 2, v%d' % (vGVM, t1, vGVM))
        a('v_lshl_add_u32 v%d, v%d, 4, v%d' % (t0, t1, j))
        a('s_mul_i32 s20, s3, 144')
        a('v_add_u32 v%d, s20, v%d' % (t0, t0))
        a('v_lshlrev_b32 v%d, 5, v%d' % (t0, t0))
        a('v_and_b32 v%d, 1, v%d' % (t1, g))
        a('v_lshl_add_u32 v%d, v%d, 4, v%d' % (t0, t1, t0))
        a('s_mul_i32 s20, s4, %d' % PSTRIDE)
        a('v_add_u32 v%d, s20, v%d' % (vGP, t0))
        a('s_lshl_b32 s20, s3, 5')
        a('s_add_u32 s5, s20, s4')
        a('s_cmp_lt_u32 s5, 72')
        a('s_cselect_b32 s6, 1, 0')
        a('s_min_u32 s5, s5, 71')
        a('s_mov_b32 s20, %d' % PSTRIDE)
        a('v_mul_lo_u32 v%d, v%d, s20' % (t0, g))
        a('v_lshl_add_u32 v%d, v%d, 4, v%d' % (t0, j, t0))
        a('s_lshl_b32 s20, s5, 8')
        a('v_add_u32 v%d, s20, v%d' % (vGR, t0))
        a('v_lshrrev_b32 v%d, 1, v%d' % (t0, j))
        a('v_lshlrev_b32 v%d, 4, v%d' % (t0, t0))
        a('v_and_b32 v%d, 1, v%d' % (t1, j))
        a('v_lshl_add_u32 v%d, v%d, 3, v%d' % (t0, t1, t0))
        a('v_lshrrev_b32 v%d, 5, v%d' % (t1, L))
        a('v_lshl_add_u32 v%d, v%d, 2, v%d' % (t0, t1, t0))
        a('s_lshl_b32 s20, s5, 7')
        a('v_add_u32 v%d, s20, v%d' % (vGMS, t0))
        a('v_lshlrev_b32 v%d, 4, v0' % vGMX)
        a('v_and_b32 v%d, 7, v%d' % (t0, L))
        a('v_lshlrev_b32 v%d, 7, v%d' % (t0, t0))
        a('v_add_u32 v%d, %d, v%d' % (t0, SX, t0))
        a('s_and_b32 s20, s3, 1')
        a('s_lshl_b32 s20, s20, 5')
        a('v_lshl_add_u32 v%d, v%d, 3, v%d' % (t1, g, t0))
        a('v_add_u32 v%d, s20, v%d' % (t1, t1))
        a('v_lshrrev_b32 v19, 1, v%d' % g)
        a('v_lshl_add_u32 v19, v19, 5, v%d' % t0)
        a('v_and_b32 v20, 1, v%d' % g)
        a('v_lshl_add_u32 v19, v20, 3, v19')
        a('v_add_u32 v19, 64, v19')
        a('s_cmp_eq_u32 s3, 2')
        a('s_cselect_b64 vcc, -1, 0')
        a('v_cndmask_b32 v%d, v%d, v19, vcc' % (vWS, t1))
        a('v_lshl_add_u32 v%d, v%d, 5, v%d' % (t0, g, t0))
        a('v_bfe_u32 v%d, v%d, 3, 1' % (t1, L))
        a('v_lshl_add_u32 v%d, v%d, 4, v%d' % (vRS, t1, t0))

    def load_weights(self, a):
        L = 76
        a('v_and_b32 v76, 63, v0')
        a('v_lshrrev_b32 v16, 4, v76')
        a('v_bfe_u32 v17, v76, 1, 3')
        a('v_xor_b32 v17, v17, v16')
        a('v_xor_b32 v18, 4, v17')
        a('v_and_b32 v19, 1, v76')
        a('v_lshlrev_b32 v19, 4, v19')
        a('v_lshlrev_b32 v20, 13, v16')
        a('v_add_u32 v20, v20, v19')
        a('v_lshl_add_u32 v21, v17, 5, v20')
        a('v_lshl_add_u32 v22, v18, 5, v20')
        a('v_bfe_u32 v23, v76, 2, 2')
        a('v_lshl_add_u32 v24, v16, 3, v23')
        a('v_lshlrev_b32 v24, 8, v24')
        a('v_and_b32 v25, 3, v76')
        a('v_lshl_add_u32 v24, v25, 3, v24')
        a('v_and_b32 v25, 1, v16')
        a('v_lshl_add_u32 v25, v25, 2, v23')
        a('s_lshl_b32 s20, s3, 1')
        a('v_xor_b32 v26, s20, v25')
        a('v_lshl_add_u32 v26, v26, 5, v24')
        a('s_add_u32 s20, s20, 1')
        a('v_xor_b32 v27, s20, v25')
        a('v_lshl_add_u32 v27, v27, 5, v24')
        for mat in range(3):
            srd = 24 + 4 * mat
            a('s_mul_i32 s20, s3, 36')
            a('s_lshl_b32 s21, s20, 10')
            a('s_lshl_b32 s22, s20, 15')
            a('s_lshl_b32 s23, s4, 8')
            a('s_add_u32 s22, s22, s23')
            for i in range(36):
                a('s_mov_b32 m0, s21')
                a('s_add_u32 s21, s21, 1024')
                a('buffer_load_dwordx4 v%d, s[%d:%d], s22 offen lds' % (21 + ((i >> 1) & 1), srd, srd + 3))
                a('s_add_u32 s22, s22, 0x8000')
            a('s_waitcnt vmcnt(0)')
            a('s_barrier')
            a('v_mov_b32 v28, v26')
            a('v_mov_b32 v29, v27')
            for kk in range(9):
                for t in range(2):
                    kind, base = wreg(mat, kk, t)
                    for hh in range(2):
                        for rd in range(2):
                            a('ds_read_b64_tr_b16 %s, v%d offset:%d' % (reg(kind, base + 4 * hh + 2 * rd, 2), 28 + t, hh * 8192 + rd * 1024))
                a('v_add_u32 v28, 16384, v28')
                a('v_add_u32 v29, 16384, v29')
                a('s_waitcnt lgkmcnt(0)')
            a('s_barrier')
        a('v_lshlrev_b32 v21, 4, v76')
        a('s_mul_i32 s20, s3, 36')
        a('s_lshl_b32 s21, s20, 10')
        a('s_mul_i32 s22, s4, 147456')
        a('s_add_u32 s22, s22, s21')
        for i in range(36):
            a('s_mov_b32 m0, s21')
            a('s_add_u32 s21, s21, 1024')
            a('buffer_load_dwordx4 v21, s[36:39], s22 offen lds')
            a('s_add_u32 s22, s22, 1024')
        a('s_waitcnt vmcnt(0)')
        a('s_barrier')
        a('v_lshl_add_u32 v24, v16, 3, v23')
        a('v_mul_u32_u24 v24, 1152, v24')
        a('v_and_b32 v25, 3, v76')
        a('v_lshl_add_u32 v24, v25, 3, v24')
        a('s_mul_i32 s20, s3, 288')
        a('v_add_u32 v24, s20, v24')
        a('v_mov_b32 v26, v%d' % vWO)
        for i in range(4):
            for t in range(9):
                for rd in range(2):
                    a('ds_read_b64_tr_b16 v[%d:%d], v24 offset:%d' % (32 + 4 * t + 2 * rd, 33 + 4 * t + 2 * rd, t * 32 + rd * 4608))
                if t % 4 == 3: a('s_waitcnt lgkmcnt(0)')
            a('s_waitcnt lgkmcnt(0)')
            a('s_barrier')
            for t in range(9):
                a('ds_write_b128 v26, v[%d:%d] offset:%d' % (32 + 4 * t, 35 + 4 * t, t * 1024))
            a('v_add_u32 v24, 36864, v24')
            a('v_add_u32 v26, 36864, v26')
            a('s_waitcnt lgkmcnt(0)')
        a('s_barrier')

    def init_state(self, a, lbl):
        st = self.st
        for part in range(3):
            if part == 2:
                a('v_cmp_gt_u32 vcc, 64, v0')
                a('s_and_saveexec_b64 s[20:21], vcc')
                a('s_cbranch_execz %s_m0skip' % lbl)
            a('v_lshlrev_b32 v16, 1, v0')
            for i in range(8):
                a('s_mov_b32 s22, %d' % (i * 1152 + part * 512))
                a('buffer_load_ushort v%d, v16, s[40:43], s22 offen' % (24 + i))
            a('s_waitcnt vmcnt(0)')
            for i in range(4):
                a('v_lshl_or_b32 v%d, v%d, 16, v%d' % (20 + i, 25 + 2 * i, 24 + 2 * i))
            a('v_add_u32 v17, %d, v%d' % (MT + part * 4096, vGMX))
            a('ds_write_b128 v17, v[20:23]')
            if part == 2:
                a.label('%s_m0skip' % lbl)
                a('s_mov_b64 exec, s[20:21]')
        a('v_mov_b32 v20, 0xff80ff80')
        a('v_lshlrev_b32 v16, 2, v0')
        a('v_add_u32 v16, %d, v16' % SX)
        a('ds_write_b32 v16, v20')
        skip = lbl + '_initskip'
        a('s_cmp_eq_u32 s6, 0')
        a('s_cbranch_scc1 %s' % skip)
        for r in range(4): a('v_mov_b32 v%d, -1' % (20 + r))
        for par in range(2):
            a('s_mov_b32 s22, %d' % (par * PBUFSZ))
            for i in range(8):
                a('buffer_store_dwordx4 v[20:23], v%d, s[44:47], s22 offen%s' % (vGR, st))
                a('s_add_u32 s22, s22, %d' % (4 * PSTRIDE))
        for b in range(4):
            a('buffer_store_dword v20, v%d, s[48:51], 0 offen offset:0%s' % (vGMS, st) if b == 0 else
              's_mov_b32 s22, %d\nbuffer_store_dword v20, v%d, s[48:51], s22 offen%s' % (b * 9216, vGMS, st))
        a.label(skip)
        a('s_waitcnt vmcnt(0) lgkmcnt(0)')
        a('s_barrier')

    def team_barrier(self, a, lbl):
        w = lbl + '_tbw'; d = lbl + '_tbd'
        a('s_cmp_lg_u32 s3, 0')
        a('s_cbranch_scc1 %s' % d)
        a('v_mov_b32 v16, 32')
        a('v_mov_b32 v17, 1')
        a('s_mov_b64 s[20:21], exec')
        a('s_mov_b64 exec, 1')
        a('buffer_atomic_add v17, v16, s[52:55], 0 offen')
        a('s_mov_b32 s22, 0')
        a.label(w)
        a('buffer_load_dword v18, v16, s[52:55], 0 offen sc1')
        a('s_waitcnt vmcnt(0)')
        a('v_readfirstlane_b32 s23, v18')
        a('s_add_u32 s22, s22, 1')
        a('s_cmp_gt_u32 s22, 200000')
        a('s_cbranch_scc1 %s_x' % w)
        a('s_cmp_lt_u32 s23, 32')
        a('s_cbranch_scc1 %s' % w)
        a.label(w + '_x')
        a('s_mov_b64 exec, s[20:21]')
        a.label(d)
        a('s_barrier')

    def step_loop(self, a, lbl):
        st = self.st
        a('s_mov_b32 s7, 0')
        a('s_lshl_b32 s8, s4, 8')
        a('s_lshl_b32 s9, s4, 13')
        a('s_lshl_b32 s10, s4, 11')
        a('s_mov_b32 s11, 0')
        a('s_mov_b32 s80, 0x%x' % f2u(SCALE))
        a('s_mov_b32 s81, 0x%x' % f2u(LOG2E))
        a.label(lbl + '_step')
        nok = lbl + '_nok'
        a('s_cmp_ge_u32 s3, 2')
        a('s_cbranch_scc1 %s' % nok)
        for kk in range(4):
            a('buffer_load_dwordx4 v[%d:%d], v%d, s[56:59], s8 offen offset:%d' % (KTR + 4 * kk, KTR + 4 * kk + 3, vGK, 64 * kk))
        a.label(nok)
        a('buffer_load_dwordx4 v[%d:%d], v%d, s[60:63], s9 offen' % (VT0, VT0 + 3, vGV))
        a('buffer_load_dwordx4 v[%d:%d], v%d, s[60:63], s9 offen offset:1024' % (VT1, VT1 + 3, vGV))
        seq = [('qk', kk) for kk in range(9)] + [('v', kk) for kk in range(9)]
        lq = LgkmQ(a)
        def rdA(n):
            kk = seq[n][1]; b = MAS[n % 3]
            for rd in range(2):
                lq.issue(('A', n), 'ds_read_b64_tr_b16 v[%d:%d], v%d offset:%d' % (b + 2 * rd, b + 2 * rd + 1, vAM, kk * 1024 + rd * 128))
        for n in range(3): rdA(n)
        for r in range(24): a('v_mov_b32 v%d, 0' % (ACC + r))
        pa = Asm()
        pair_sum(pa, ACC, ACC + 4)
        pa('v_cvt_pk_bf16_f32 v%d, v%d, v%d' % (ACC + 4, ACC, ACC + 1))
        pa('v_cvt_pk_bf16_f32 v%d, v%d, v%d' % (ACC + 5, ACC + 2, ACC + 3))
        pa('ds_write_b64 v%d, v[%d:%d]' % (vWQ, ACC + 4, ACC + 5))
        pair_sum(pa, ACC + 8, ACC + 12)
        pa('v_cvt_pk_bf16_f32 v%d, v%d, v%d' % (ACC + 12, ACC + 8, ACC + 9))
        pa('v_cvt_pk_bf16_f32 v%d, v%d, v%d' % (ACC + 13, ACC + 10, ACC + 11))
        pa('ds_write_b64 v%d, v[%d:%d] offset:%d' % (vWQ, ACC + 12, ACC + 13, KT - QT))
        post = [l.strip() for l in pa.lines]
        pi = 0
        def emit_post(k):
            nonlocal pi
            for _ in range(k):
                if pi < len(post):
                    if post[pi].startswith('ds_'): lq.issue('W', post[pi])
                    else: a(post[pi])
                    pi += 1
        for n, (kind, kk) in enumerate(seq):
            lq.wait(('A', n))
            b = MAS[n % 3]
            if kind == 'qk':
                for ti, (mat, t) in enumerate(((0, 0), (0, 1), (1, 0), (1, 1))):
                    k_, wb = wreg(mat, kk, t)
                    smf(a, ACC + 4 * ti, b, wb, k_)
            else:
                for t in range(2):
                    k_, wb = wreg(2, kk, t)
                    smf(a, ACC + 16 + 4 * t, b, wb, k_)
                    if kk >= 1: emit_post(3)
            if n + 3 < len(seq): rdA(n + 3)
        emit_post(100)
        lq.wait_all()
        a('s_barrier')
        w3 = lbl + '_w3'; w2 = lbl + '_w2'; sc = lbl + '_sc'; b2 = lbl + '_b2'
        a('s_cmp_eq_u32 s3, 3')
        a('s_cbranch_scc1 %s' % w3)
        QOP = ACC
        for kk in range(4):
            for rd in range(2):
                a('ds_read_b64_tr_b16 v[%d:%d], v%d offset:%d' % (QOP + 4 * kk + 2 * rd, QOP + 4 * kk + 2 * rd + 1, vAQ, kk * 512 + rd * 64))
        a('s_cmp_eq_u32 s3, 2')
        a('s_cbranch_scc0 %s' % sc)
        for kk in range(4):
            for rd in range(2):
                a('ds_read_b64_tr_b16 v[%d:%d], v%d offset:%d' % (KTR + 4 * kk + 2 * rd, KTR + 4 * kk + 2 * rd + 1, vAQ, KT - QT + kk * 512 + rd * 64))
        a.label(sc)
        a('s_waitcnt vmcnt(2) lgkmcnt(0)')
        for kk in range(4):
            a('v_mfma_f32_16x16x32_bf16 v[%d:%d], v[%d:%d], v[%d:%d], %s' % (TMP, TMP + 3, KTR + 4 * kk, KTR + 4 * kk + 3,
              QOP + 4 * kk, QOP + 4 * kk + 3, '0' if kk == 0 else 'v[%d:%d]' % (TMP, TMP + 3)))
        a('s_nop 7')
        X = QOP
        a('v_cvt_pk_bf16_f32 v%d, v%d, v%d' % (X, TMP, TMP + 1))
        a('v_cvt_pk_bf16_f32 v%d, v%d, v%d' % (X + 1, TMP + 2, TMP + 3))
        unpack2(a, TMP, TMP + 1, X); unpack2(a, TMP + 2, TMP + 3, X + 1)
        for r in range(4): a('v_mul_f32 v%d, s80, v%d' % (TMP + r, TMP + r))
        a('v_cvt_pk_bf16_f32 v%d, v%d, v%d' % (X, TMP, TMP + 1))
        a('v_cvt_pk_bf16_f32 v%d, v%d, v%d' % (X + 1, TMP + 2, TMP + 3))
        a('s_cmp_eq_u32 s3, 2')
        a('s_cbranch_scc1 %s' % w2)
        a('ds_write_b64 v%d, v[%d:%d]' % (vWS, X, X + 1))
        a('s_branch %s' % w3)
        a.label(w2)
        a('s_mov_b32 vcc_lo, 0')
        a('s_mov_b32 vcc_hi, -1')
        a('v_cndmask_b32 v%d, v%d, v%d, vcc' % (X, X, X + 1))
        a('ds_write_b32 v%d, v%d' % (vWS, X))
        for kk in range(4):
            a('buffer_store_dwordx4 v[%d:%d], v%d, s[64:67], s10 offen offset:%d' % (KTR + 4 * kk, KTR + 4 * kk + 3, vGK, 64 * kk))
        a.label(w3)
        for t, (vb, ma) in enumerate(((ACC + 16, MA0), (ACC + 20, MA1))):
            a('v_permlane32_swap_b32 v%d, v%d' % (vb, vb + 2))
            a('v_permlane32_swap_b32 v%d, v%d' % (vb + 1, vb + 3))
            a('s_nop 0')
            a('v_add_f32 v%d, v%d, v%d' % (vb, vb, vb + 2))
            a('v_add_f32 v%d, v%d, v%d' % (vb + 1, vb + 1, vb + 3))
            a('v_cvt_pk_bf16_f32 v%d, v%d, v%d' % (ma, vb, vb + 1))
            for r in range(1, 4): a('v_mov_b32 v%d, 0' % (ma + r))
            a('buffer_store_dword v%d, v%d, s[68:71], s10 offen offset:%d' % (ma, vGVM, 256 * t))
        for r in range(8): a('v_mov_b32 v%d, 0' % (ACC + 16 + r))
        a('s_waitcnt lgkmcnt(0)')
        a('s_barrier')
        Sv = ACC
        a('ds_read_b128 v[%d:%d], v%d' % (Sv, Sv + 3, vRS))
        a('s_waitcnt lgkmcnt(0)')
        U = Sv + 4
        for d in range(4): unpack2(a, U + 2 * d, U + 2 * d + 1, Sv + d)
        Mx, T_ = U + 8, U + 9
        a('v_max3_f32 v%d, v%d, v%d, v%d' % (Mx, U, U + 1, U + 2))
        a('v_max3_f32 v%d, v%d, v%d, v%d' % (Mx, Mx, U + 3, U + 4))
        a('v_max3_f32 v%d, v%d, v%d, v%d' % (Mx, Mx, U + 5, U + 6))
        a('v_max_f32 v%d, v%d, v%d' % (Mx, Mx, U + 7))
        def xred(v, t, ins):
            a('s_nop 1')
            a('%s_dpp v%d, v%d, v%d row_ror:8 row_mask:0xf bank_mask:0xf' % (ins, v, v, v))
            for sw in ('v_permlane16_swap_b32', 'v_permlane32_swap_b32'):
                a('v_mov_b32 v%d, v%d' % (t, v))
                a('s_nop 1')
                a('%s v%d, v%d' % (sw, v, t))
                a('s_nop 0')
                a('%s v%d, v%d, v%d' % (ins, v, v, t))
        xred(Mx, T_, 'v_max_f32')
        a('v_mul_f32 v%d, s81, v%d' % (Mx, Mx))
        for i in range(8): a('v_fma_f32 v%d, v%d, s81, -v%d' % (U + i, U + i, Mx))
        for i in range(8): a('v_exp_f32 v%d, v%d' % (U + i, U + i))
        a('s_nop 0')
        a('v_add_f32 v%d, v%d, v%d' % (Mx, U, U + 1))
        for i in range(2, 8): a('v_add_f32 v%d, v%d, v%d' % (Mx, Mx, U + i))
        xred(Mx, T_, 'v_add_f32')
        a('v_rcp_f32 v%d, v%d' % (Mx, Mx))
        a('s_nop 0')
        for i in range(8): a('v_mul_f32 v%d, v%d, v%d' % (U + i, U + i, Mx))
        for d in range(4): a('v_cvt_pk_bf16_f32 v%d, v%d, v%d' % (Sv + d, U + 2 * d, U + 2 * d + 1))
        a('s_waitcnt vmcnt(2)')
        a('s_waitcnt vmcnt(0)')
        a('s_nop 1')
        O0, O1 = ACC + 16, ACC + 20
        smf(a, O0, Sv, VT0); smf(a, O1, Sv, VT1)
        a('s_nop 7')
        pair_sum(a, O0, O1)
        a('v_cvt_pk_bf16_f32 v%d, v%d, v%d' % (O1, O0, O0 + 1))
        a('v_cvt_pk_bf16_f32 v%d, v%d, v%d' % (O1 + 1, O0 + 2, O0 + 3))
        a('ds_write_b64 v%d, v[%d:%d] offset:%d' % (vWQ, O1, O1 + 1, OT - QT))
        a('s_waitcnt lgkmcnt(0)')
        a('s_barrier')
        OA = ACC
        lq = LgkmQ(a)
        for kk in range(2):
            for rd in range(2):
                lq.issue('OA', 'ds_read_b64_tr_b16 v[%d:%d], v%d offset:%d' % (OA + 4 * kk + 2 * rd, OA + 4 * kk + 2 * rd + 1, vAM, OT - MT + kk * 1024 + rd * 128))
        a('v_add_u32 v%d, 73728, v%d' % (TMP, vWO))
        BB = [40, 48, 56, 64]
        WA = [ACC + 8, ACC + 16]
        items = [(ct, kk) for ct in range(9) for kk in range(2)]
        def rdB(n):
            ct, kk = items[n]; b = BB[n % 4]; base = vWO if kk == 0 else TMP
            lq.issue(('B', n), 'ds_read_b128 v[%d:%d], v%d offset:%d' % (b, b + 3, base, ct * 1024))
            lq.issue(('B', n), 'ds_read_b128 v[%d:%d], v%d offset:%d' % (b + 4, b + 7, base, 36864 + ct * 1024))
        for n in range(4): rdB(n)
        for r in range(16): a('v_mov_b32 v%d, 0' % (ACC + 8 + r))
        for n, (ct, kk) in enumerate(items):
            lq.wait(('B', n))
            accr = WA[(ct // 2) % 2] + 4 * (ct % 2)
            smf(a, accr, OA + 4 * kk, BB[n % 4])
            if n + 4 < len(items): rdB(n + 4)
            if kk == 1 and ct % 2 == 1:
                p = ct // 2; T0 = WA[p % 2]
                a('s_nop 7')
                pair_sum(a, T0, T0 + 4)
                a('buffer_store_dwordx4 v[%d:%d], v%d, s[44:47], s11 offen offset:%d%s' % (T0, T0 + 3, vGP, 1024 * p, st))
                for r in range(4, 8): a('v_mov_b32 v%d, 0' % (T0 + r))
                if p >= 1:
                    Tn = WA[(p + 1) % 2]
                    for r in range(4): a('v_mov_b32 v%d, 0' % (Tn + r))
                a('s_nop 1')
        T0 = WA[0]
        a('s_nop 7')
        for r in range(4): a('v_mov_b32 v%d, v%d' % (T0 + 4 + r, T0 + r))
        a('s_nop 0')
        pair_sum(a, T0, T0 + 4)
        a('s_add_u32 s20, s11, 4096')
        a('s_mov_b64 exec, 0xffffffff')
        a('buffer_store_dwordx4 v[%d:%d], v%d, s[44:47], s20 offen%s' % (T0, T0 + 3, vGP, st))
        a('s_mov_b64 exec, -1')
        nored = lbl + '_nored'; rl = lbl + '_rl'; rok = lbl + '_rok'
        a('s_cmp_eq_u32 s6, 0')
        a('s_cbranch_scc1 %s' % nored)
        RG = [16, 20, 24, 28, 32, 36, 40, 44]
        a('s_mov_b32 s22, 0')
        a.label(rl)
        a('s_mov_b32 s20, s11')
        for i in range(8):
            a('buffer_load_dwordx4 v[%d:%d], v%d, s[44:47], s20 offen sc1' % (RG[i], RG[i] + 3, vGR))
            if i < 7: a('s_add_u32 s20, s20, %d' % (4 * PSTRIDE))
        a('s_waitcnt vmcnt(0)')
        a('v_max3_u32 v48, v16, v20, v24')
        a('v_max3_u32 v48, v48, v28, v32')
        a('v_max3_u32 v48, v48, v36, v40')
        a('v_max_u32 v48, v48, v44')
        a('v_cmp_eq_u32 vcc, -1, v48')
        a('s_add_u32 s22, s22, 1')
        a('s_cmp_gt_u32 s22, 20000')
        a('s_cbranch_scc1 %s' % rok)
        a('s_cbranch_vccnz %s' % rl)
        a.label(rok)
        for i in range(1, 8):
            for r in range(4): a('v_add_f32 v%d, v%d, v%d' % (16 + r, 16 + r, RG[i] + r))
        a('s_nop 1')
        a('v_permlane32_swap_b32 v16, v18')
        a('v_permlane32_swap_b32 v17, v19')
        a('s_nop 0')
        a('v_add_f32 v16, v16, v18')
        a('v_add_f32 v17, v17, v19')
        a('s_nop 1')
        a('v_permlane16_swap_b32 v16, v17')
        a('s_nop 0')
        a('v_add_f32 v16, v16, v17')
        a('v_mov_b32 v17, v16')
        a('s_nop 1')
        a('v_permlane16_swap_b32 v16, v17')
        a('s_nop 0')
        a('v_cvt_pk_bf16_f32 v16, v16, v17')
        a('s_add_u32 s20, s7, 1')
        a('s_and_b32 s21, s20, 3')
        a('s_mul_i32 s21, s21, 9216')
        a('buffer_store_dword v16, v%d, s[48:51], s21 offen%s' % (vGMS, st))
        a('s_mul_i32 s21, s20, 9216')
        a('buffer_store_dword v16, v%d, s[72:75], s21 offen' % vGMS)
        for r in range(4): a('v_mov_b32 v%d, -1' % (20 + r))
        a('s_and_b32 s21, s7, 3')
        a('s_mul_i32 s21, s21, 9216')
        a('buffer_store_dword v20, v%d, s[48:51], s21 offen%s' % (vGMS, st))
        a('s_mov_b32 s20, s11')
        for i in range(8):
            a('buffer_store_dwordx4 v[20:23], v%d, s[44:47], s20 offen%s' % (vGR, st))
            if i < 7: a('s_add_u32 s20, s20, %d' % (4 * PSTRIDE))
        a.label(nored)
        ml = lbl + '_ml'; mok = lbl + '_mok'; m2 = lbl + '_m2'; m3 = lbl + '_m3'; m4 = lbl + '_m4'
        a('s_cmp_eq_u32 s7, 63')
        a('s_cbranch_scc1 %s_end' % lbl)
        a('s_add_u32 s20, s7, 1')
        a('s_and_b32 s21, s20, 3')
        a('s_mul_i32 s21, s21, 9216')
        a('s_add_u32 s23, s21, 4096')
        a('s_add_u32 s24_, s21, 8192'.replace('s24_', 's19'))
        a('s_mov_b32 s22, 0')
        a('v_mov_b32 v56, 0'); a('v_mov_b32 v57, 0'); a('v_mov_b32 v58, 0'); a('v_mov_b32 v59, 0')
        a.label(ml)
        a('buffer_load_dwordx4 v[48:51], v%d, s[48:51], s21 offen sc1' % vGMX)
        a('buffer_load_dwordx4 v[52:55], v%d, s[48:51], s23 offen sc1' % vGMX)
        a('s_cmp_lg_u32 s3, 0')
        a('s_cbranch_scc1 %s' % m2)
        a('buffer_load_dwordx4 v[56:59], v%d, s[48:51], s19 offen sc1' % vGMX)
        a.label(m2)
        a('s_waitcnt vmcnt(0)')
        a('v_max3_u32 v60, v48, v49, v50')
        a('v_max3_u32 v60, v60, v51, v52')
        a('v_max3_u32 v60, v60, v53, v54')
        a('v_max3_u32 v60, v60, v55, v56')
        a('v_max3_u32 v60, v60, v57, v58')
        a('v_max_u32 v60, v60, v59')
        a('v_cmp_eq_u32 vcc, -1, v60')
        a('s_add_u32 s22, s22, 1')
        a('s_cmp_gt_u32 s22, 20000')
        a('s_cbranch_scc1 %s' % mok)
        a('s_cbranch_vccnz %s' % ml)
        a.label(mok)
        a('v_add_u32 v60, %d, v%d' % (MT, vGMX))
        a('ds_write_b128 v60, v[48:51]')
        a('ds_write_b128 v60, v[52:55] offset:4096')
        a('s_cmp_lg_u32 s3, 0')
        a('s_cbranch_scc1 %s' % m3)
        a('ds_write_b128 v60, v[56:59] offset:8192')
        a.label(m3)
        a('s_waitcnt lgkmcnt(0)')
        a('s_barrier')
        a('s_add_u32 s7, s7, 1')
        a('s_add_u32 s8, s8, %d' % (32 * 8192))
        a('s_add_u32 s9, s9, %d' % (32 * 8192))
        a('s_add_u32 s10, s10, %d' % (32 * 2048))
        a('s_xor_b32 s11, s11, %d' % PBUFSZ)
        a('s_branch %s_step' % lbl)
        a.label(lbl + '_end')

def gen_chain(a, name='chain_kernel', fast=False):
    kernel_begin(a, name)
    done = a.newlabel('Lch_done')
    a('s_cmp_ge_u32 s2, 32')
    a('s_cbranch_scc1 %s' % done)
    load_ptr(a, 12, 'wq'); load_ptr(a, 14, 'wk'); load_ptr(a, 16, 'wv'); load_ptr(a, 18, 'wo')
    load_ptr(a, 76, 'mem0'); load_ptr(a, 78, 'ws'); load_ptr(a, 82, 'dbg')
    wave_id(a, 3)
    a('s_mov_b32 s4, s2')
    a('s_waitcnt lgkmcnt(0)')
    make_srd(a, 24, 12, 0, D * HD * 2); make_srd(a, 28, 14, 0, D * HD * 2); make_srd(a, 32, 16, 0, D * HD * 2)
    make_srd(a, 36, 18, 0, HD * D * 2)
    make_srd(a, 40, 76, 0, MEM * D * 2)
    make_srd(a, 44, 78, WS.PBUF, WS.PBUF_SZ)
    make_srd(a, 48, 78, WS.MX, WS.MX_SZ)
    make_srd(a, 52, 82, 0, 256)
    make_srd(a, 56, 78, WS.K, WS.K_SZ)
    make_srd(a, 60, 78, WS.VT, WS.VT_SZ)
    make_srd(a, 64, 78, WS.KM, WS.KM_SZ)
    make_srd(a, 68, 78, WS.VMT, WS.VMT_SZ)
    make_srd(a, 72, 78, WS.MH, WS.MH_SZ)
    c = Chain(fast)
    lbl = a.newlabel('Lch')
    c.prologue_addrs(a)
    c.load_weights(a)
    c.init_state(a, lbl)
    c.team_barrier(a, lbl)
    c.step_loop(a, lbl)
    a.label(done)
    a('s_endpgm')
    return kernel_desc(name, 512, 96, 256), '; @launch kernel=%s grid=(32,1,1) block=(256,1,1) lds=%d' % (name, LDS_TOTAL)
```

```python
from asmlib import *

def sdivmod(a, sq, srem, sx, d, stmp):
    magic = -(-(1 << 32) // d)
    a('s_mov_b32 s%d, 0x%x' % (stmp, magic))
    a('s_mul_hi_u32 s%d, s%d, s%d' % (sq, sx, stmp))
    a('s_mul_i32 s%d, s%d, %d' % (stmp, sq, d))
    a('s_sub_u32 s%d, s%d, s%d' % (srem, sx, stmp))

class Gemm:
    NST = 4
    def __init__(self, BM, BN, K, lda, ldb, orient):
        self.BM, self.BN, self.K, self.lda, self.ldb, self.orient = BM, BN, K, lda, ldb, orient
        self.TM, self.TN = BM // 32, BN // 32 if BN % 32 == 0 else None
        assert BM % 64 == 0 and BN % 32 == 0
        self.nsteps = K // 32
        self.nA = BM // 64
        self.PPR = BN // 16
        self.UPR = BN // 8
        self.nBtot = self.UPR // 2
        self.nB = (self.nBtot + 3) // 4
        self.BST = 64 * BN
        self.AST = 64 * BM
        self.BREG = 0
        self.AREG = self.NST * self.BST
        self.lds = self.NST * (self.BST + self.AST)
        nacc = self.TM * self.TN * 4
        nfrag = 2 * (self.TM + self.TN) * 4
        self.v_dmaA = 4
        self.v_dmaB = self.v_dmaA + self.nA
        self.v_rdA = self.v_dmaB + self.nB
        self.v_rdB = self.v_rdA + 1
        self.v_free = (self.v_rdB + self.TN + 3) // 4 * 4
        if self.v_free + nacc + 24 <= 256:
            self.acc_kind, self.acc_base = 'v', self.v_free
            self.frag_kind, self.frag_base = 'a', 0
            self.v_tmp = self.v_free + nacc
            self.nagpr = nfrag
        else:
            assert nacc <= 256
            self.acc_kind, self.acc_base = 'a', 0
            self.frag_kind, self.frag_base = 'v', self.v_free
            self.v_tmp = self.v_free
            self.nagpr = nacc
            assert self.v_free + nfrag <= 256
        self.D = self.nA + self.nB

    def acc(self, mt, nt):
        return self.acc_base + (mt * self.TN + nt) * 4
    def fragA(self, s, mt):
        return self.frag_base + s * (self.TM + self.TN) * 4 + mt * 4
    def fragB(self, s, nt):
        return self.frag_base + s * (self.TM + self.TN) * 4 + (self.TM + nt) * 4

    def delta_expr(self, a, vk, vd, vt):
        m = self.PPR % 8
        if m == 0:
            a('v_and_b32 v%d, 3, v%d' % (vd, vk))
            a('v_bfe_u32 v%d, v%d, 3, 1' % (vt, vk))
            a('v_lshl_add_u32 v%d, v%d, 2, v%d' % (vd, vt, vd))
        elif m == 4:
            a('v_bfe_u32 v%d, v%d, 1, 1' % (vd, vk))
            a('v_bfe_u32 v%d, v%d, 3, 1' % (vt, vk))
            a('v_lshl_add_u32 v%d, v%d, 1, v%d' % (vd, vt, vd))
        else:
            a('v_bfe_u32 v%d, v%d, 3, 1' % (vd, vk))

    def setup(self, a, s_wave):
        t0, t1, t2, t3, t4 = [self.v_tmp + i for i in range(5)]
        a('v_and_b32 v1, 63, v0')
        a('v_lshrrev_b32 v2, 2, v1')
        a('v_lshrrev_b32 v3, 4, v1')
        a('v_sub_u32 v3, 0, v3')
        a('v_xor_b32 v3, v3, v1')
        a('v_and_b32 v3, 3, v3')
        a('s_mov_b32 s40, %d' % self.lda)
        a('v_mul_lo_u32 v2, v2, s40')
        a('v_lshl_add_u32 v2, v3, 4, v2')
        for i in range(self.nA):
            a('s_add_u32 s41, s%d, %d' % (s_wave, 4 * i))
            a('s_mul_i32 s41, s41, %d' % (16 * self.lda))
            a('v_add_u32 v%d, s41, v2' % (self.v_dmaA + i))
        magic = -(-(1 << 32) // self.UPR)
        for i in range(self.nB):
            a('s_add_u32 s41, s%d, %d' % (s_wave, 4 * i))
            a('s_min_u32 s41, s41, %d' % (self.nBtot - 1))
            a('s_lshl_b32 s41, s41, 6')
            a('v_add_u32 v%d, s41, v1' % t0)
            a('s_mov_b32 s42, 0x%x' % magic)
            a('v_mul_hi_u32 v%d, v%d, s42' % (t1, t0))
            a('v_mul_u32_u24 v%d, %d, v%d' % (t2, self.UPR, t1))
            a('v_sub_u32 v%d, v%d, v%d' % (t2, t0, t2))
            self.delta_expr(a, t1, t3, t4)
            a('v_lshrrev_b32 v%d, 1, v%d' % (t4, t2))
            a('v_sub_u32 v%d, v%d, v%d' % (t4, t4, t3))
            a('v_add_u32 v%d, %d, v%d' % (t3, self.PPR, t4))
            a('v_cmp_gt_i32 vcc, 0, v%d' % t4)
            a('s_nop 1')
            a('v_cndmask_b32 v%d, v%d, v%d, vcc' % (t4, t4, t3))
            a('v_and_b32 v%d, 1, v%d' % (t2, t2))
            a('v_lshlrev_b32 v%d, 4, v%d' % (t2, t2))
            a('v_lshl_add_u32 v%d, v%d, 5, v%d' % (t2, t4, t2))
            a('s_mov_b32 s42, %d' % self.ldb)
            a('v_mul_lo_u32 v%d, v%d, s42' % (t1, t1))
            a('v_add_u32 v%d, v%d, v%d' % (self.v_dmaB + i, t1, t2))
        a('v_and_b32 v2, 15, v1')
        a('v_lshrrev_b32 v3, 2, v2')
        a('v_sub_u32 v3, 0, v3')
        a('v_lshrrev_b32 v%d, 4, v1' % t0)
        a('v_xor_b32 v3, v3, v%d' % t0)
        a('v_and_b32 v3, 3, v3')
        a('v_lshlrev_b32 v3, 4, v3')
        a('v_lshl_add_u32 v3, v2, 6, v3')
        a('s_lshr_b32 s41, s%d, 1' % s_wave)
        a('s_mul_i32 s41, s41, %d' % (self.BM // 2 * 64))
        a('s_add_u32 s41, s41, %d' % self.AREG)
        a('v_add_u32 v%d, s41, v3' % self.v_rdA)
        a('v_bfe_u32 v2, v1, 2, 2')
        a('v_lshl_add_u32 v2, v%d, 3, v2' % t0)
        self.delta_expr(a, 2, t3, t4)
        a('v_mul_u32_u24 v2, %d, v2' % (self.BN * 2))
        a('v_and_b32 v3, 3, v1')
        a('v_lshl_add_u32 v2, v3, 3, v2')
        a('s_and_b32 s41, s%d, 1' % s_wave)
        a('s_mul_i32 s41, s41, %d' % self.TN)
        for nt in range(self.TN):
            a('s_add_u32 s42, s41, %d' % nt)
            a('v_add_u32 v%d, s42, v%d' % (t1, t3))
            a('v_subrev_u32 v%d, %d, v%d' % (t2, self.PPR, t1))
            a('v_cmp_le_u32 vcc, %d, v%d' % (self.PPR, t1))
            a('s_nop 1')
            a('v_cndmask_b32 v%d, v%d, v%d, vcc' % (t1, t1, t2))
            a('v_lshl_add_u32 v%d, v%d, 5, v2' % (self.v_rdB + nt, t1))
        a('s_lshl_b32 s44, s%d, 10' % s_wave)
        a('s_add_u32 s45, s44, %d' % self.AREG)

    def dma_list(self, st):
        out = []
        for i in range(self.nA):
            out.append(['s_add_u32 m0, s45, %d' % (st * self.AST + i * 4096)  , 's_nop 0',
                        'buffer_load_dwordx4 v%d, s[12:15], s46 offen lds' % (self.v_dmaA + i)])
        for i in range(self.nB):
            j_off = i * 4096
            if (4 * i + 3) >= self.nBtot:
                out.append(['s_min_u32 s43, s44, %d' % ((self.nBtot - 1 - 4 * i) * 1024),
                            's_add_u32 m0, s43, %d' % (st * self.BST + j_off), 's_nop 0',
                            'buffer_load_dwordx4 v%d, s[16:19], s47 offen lds' % (self.v_dmaB + i)])
            else:
                out.append(['s_add_u32 m0, s44, %d' % (st * self.BST + j_off), 's_nop 0',
                            'buffer_load_dwordx4 v%d, s[16:19], s47 offen lds' % (self.v_dmaB + i)])
        return out
    def dma_adv(self):
        return ['s_add_u32 s46, s46, 64', 's_add_u32 s47, s47, %d' % (32 * self.ldb)]

    def read_list(self, st, s):
        out = []
        fk = self.frag_kind
        for mt in range(self.TM):
            out.append('ds_read_b128 %s, v%d offset:%d' % (reg(fk, self.fragA(s, mt), 4), self.v_rdA, st * self.AST + mt * 1024))
        for nt in range(self.TN):
            for rd in range(2):
                out.append('ds_read_b64_tr_b16 %s, v%d offset:%d' % (reg(fk, self.fragB(s, nt) + 2 * rd, 2), self.v_rdB + nt,
                                                                    st * self.BST + rd * 4 * self.BN * 2))
        return out

    def mfma_list(self, s):
        out = []
        fk, ak = self.frag_kind, self.acc_kind
        for mt in range(self.TM):
            for nt in range(self.TN):
                A = reg(fk, self.fragA(s, mt), 4); B = reg(fk, self.fragB(s, nt), 4)
                c = reg(ak, self.acc(mt, nt), 4)
                if self.orient == 'T': out.append('v_mfma_f32_16x16x32_bf16 %s, %s, %s, %s' % (c, B, A, c))
                else: out.append('v_mfma_f32_16x16x32_bf16 %s, %s, %s, %s' % (c, A, B, c))
        return out

    def step(self, a, i, dma, rd):
        s = i & 1
        mf = self.mfma_list(s)
        side = []
        if dma:
            for grp in self.dma_list((i + 3) % 4): side.append(grp)
            side.append(self.dma_adv())
        reads = [[x] for x in self.read_list((i + 1) % 4, s ^ 1)] if rd else []
        order = []
        ri, di = 0, 0
        while ri < len(reads) or di < len(side):
            for _ in range(2):
                if ri < len(reads): order.append(reads[ri]); ri += 1
            if di < len(side): order.append(side[di]); di += 1
        a('s_waitcnt lgkmcnt(0)')
        n = len(mf)
        span = max(1, int(n * 0.8))
        pos = [int(k * span / max(1, len(order))) for k in range(len(order))]
        k = 0
        for m in range(n):
            a(mf[m])
            while k < len(order) and pos[k] <= m:
                for x in order[k]: a(x)
                k += 1
        while k < len(order):
            for x in order[k]: a(x)
            k += 1
        if rd and i is not None:
            pass

    def mainloop(self, a, lbl):
        n = self.nsteps
        D = self.D
        for st in range(3):
            if st < n:
                for grp in self.dma_list(st):
                    for x in grp: a(x)
                for x in self.dma_adv(): a(x)
        ak = self.acc_kind
        for r in range(self.TM * self.TN * 4):
            if ak == 'v': a('v_mov_b32 v%d, 0' % (self.acc_base + r))
            else: a('v_accvgpr_write_b32 a%d, 0' % (self.acc_base + r))
        a('s_waitcnt vmcnt(%d)' % (2 * D))
        a('s_barrier')
        for x in self.read_list(0, 0): a(x)
        a('s_waitcnt vmcnt(%d)' % D)
        a('s_barrier')
        nfull = n - 3
        nloop = nfull // 4
        i = 0
        if nloop > 0:
            a('s_mov_b32 s48, %d' % nloop)
            a.label(lbl + '_loop')
            for u in range(4):
                self.step(a, u, True, True)
                a('s_waitcnt vmcnt(%d)' % D)
                a('s_barrier')
            a('s_sub_u32 s48, s48, 1')
            a('s_cmp_lg_u32 s48, 0')
            a('s_cbranch_scc1 %s_loop' % lbl)
            i = nloop * 4
        while i < n:
            dma = (i + 3 < n); rd = (i + 1 < n)
            self.step(a, i, dma, rd)
            if i + 2 < n:
                a('s_waitcnt vmcnt(%d)' % (D if dma else 0))
                a('s_barrier')
            i += 1
        a('s_nop 7')
        a('s_nop 7')
```

```python
from asmlib import *
from k_gemm import *
from k_small import f2u, LOG2E

def wave_id(a, sdst):
    a('v_lshrrev_b32 v1, 6, v0')
    a('s_nop 0')
    a('v_readfirstlane_b32 s%d, v1' % sdst)
    a('s_nop 3')

def acc_to_v(a, g, mt, nt, vt):
    b = g.acc(mt, nt)
    if g.acc_kind == 'v': return b
    for r in range(4): a('v_accvgpr_read_b32 v%d, a%d' % (vt + r, b + r))
    return vt

def swap_pair(a, R):
    a('s_nop 1')
    a('v_permlane16_swap_b32 v%d, v%d' % (R, R + 2))
    a('v_permlane16_swap_b32 v%d, v%d' % (R + 1, R + 3))

def pack_pair_T(a, g, mt, nt0, R, vt):
    for k, nt in enumerate((nt0, nt0 + 1)):
        b = acc_to_v(a, g, mt, nt, (vt or 0) + 4 * k)
        a('v_cvt_pk_bf16_f32 v%d, v%d, v%d' % (R + 2 * k, b, b + 1))
        a('v_cvt_pk_bf16_f32 v%d, v%d, v%d' % (R + 2 * k + 1, b + 2, b + 3))
    swap_pair(a, R)

def lane_T_offsets(a, vdst, ldc, vt):
    a('v_and_b32 v%d, 15, v1' % vt)
    a('s_mov_b32 s40, %d' % ldc)
    a('v_mul_lo_u32 v%d, v%d, s40' % (vdst, vt))
    a('v_bfe_u32 v%d, v1, 4, 1' % vt)
    a('v_lshl_add_u32 v%d, v%d, 5, v%d' % (vdst, vt, vdst))
    a('v_bfe_u32 v%d, v1, 5, 1' % vt)
    a('v_lshl_add_u32 v%d, v%d, 4, v%d' % (vdst, vt, vdst))

def lane_col_offsets(a, vdst, vt):
    a('v_bfe_u32 v%d, v1, 4, 1' % vt)
    a('v_lshlrev_b32 v%d, 5, v%d' % (vdst, vt))
    a('v_bfe_u32 v%d, v1, 5, 1' % vt)
    a('v_lshl_add_u32 v%d, v%d, 4, v%d' % (vdst, vt, vdst))

def wave_base(a, g, sdst, s_bm, s_bn, ldc, s_row0=None, s_col0=None):
    a('s_lshr_b32 s40, s3, 1')
    a('s_mul_i32 s40, s40, %d' % (g.BM // 2))
    a('s_mul_i32 s41, s%d, %d' % (s_bm, g.BM))
    a('s_add_u32 s40, s40, s41')
    if s_row0 is not None: a('s_mov_b32 s%d, s40' % s_row0)
    a('s_mul_i32 s40, s40, %d' % ldc)
    a('s_and_b32 s41, s3, 1')
    a('s_mul_i32 s41, s41, %d' % (g.BN // 2))
    a('s_mul_i32 s42, s%d, %d' % (s_bn, g.BN))
    a('s_add_u32 s41, s41, s42')
    if s_col0 is not None: a('s_mov_b32 s%d, s41' % s_col0)
    a('s_lshl_b32 s41, s41, 1')
    a('s_add_u32 s%d, s40, s41' % sdst)

LAUNCH = '; @launch kernel=%s grid=(%d,1,1) block=(256,1,1) lds=%d'

def finish(name, g, grid):
    nv = 256
    return kernel_desc(name, 256 + g.nagpr, 64, 256), LAUNCH % (name, grid, g.lds)

def gen_qkv(a, name='qkv_kernel'):
    kernel_begin(a, name)
    done = a.newlabel('Lqkv_done')
    a('s_cmp_ge_u32 s2, 384')
    a('s_cbranch_scc1 %s' % done)
    load_ptr(a, 4, 'wq'); load_ptr(a, 6, 'wk'); load_ptr(a, 8, 'wv'); load_ptr(a, 10, 'ws')
    wave_id(a, 3)
    a('s_and_b32 s30, s2, 7')
    a('s_lshr_b32 s31, s2, 3')
    sdivmod(a, 32, 33, 31, 6, 34)
    a('s_mul_i32 s30, s30, 6')
    a('s_add_u32 s30, s30, s33')
    a('s_lshr_b32 s35, s30, 4')
    a('s_and_b32 s36, s30, 15')
    a('s_waitcnt lgkmcnt(0)')
    make_srd(a, 12, 10, WS.H1, S * D * 2)
    a('s_cmp_eq_u32 s35, 1')
    a('s_cselect_b32 s16, s6, s4')
    a('s_cselect_b32 s17, s7, s5')
    a('s_cmp_eq_u32 s35, 2')
    a('s_cselect_b32 s16, s8, s16')
    a('s_cselect_b32 s17, s9, s17')
    a('s_mov_b32 s18, %d' % (D * HD * 2))
    a('s_mov_b32 s19, 0x20000')
    a('s_mul_i32 s46, s32, %d' % (256 * D * 2))
    a('s_lshl_b32 s47, s36, 9')
    lv = a.newlabel('Lqkv_v')
    gT = Gemm(256, 256, D, D * 2, HD * 2, 'T')
    gN = Gemm(256, 256, D, D * 2, HD * 2, 'N')
    gT.setup(a, 3)
    a('s_cmp_eq_u32 s35, 2')
    a('s_cbranch_scc1 %s' % lv)
    g = gT
    g.mainloop(a, a.newlabel('Lqk'))
    a('s_cmp_eq_u32 s35, 1')
    a('s_mov_b32 s37, 0x%x' % WS.Q)
    a('s_cselect_b32 s37, 0x%x, s37' % WS.K)
    a('s_add_u32 s20, s10, s37')
    a('s_addc_u32 s21, s11, 0')
    a('s_mov_b32 s22, %d' % (S * HD * 2))
    a('s_mov_b32 s23, 0x20000')
    vt = g.v_tmp
    voff = vt
    lane_T_offsets(a, voff, HD * 2, vt + 1)
    wave_base(a, g, 38, 32, 36, HD * 2)
    k = 0
    for mt in range(g.TM):
        for p in range(g.TN // 2):
            R = vt + 4 + 12 * (k % 4); k += 1
            pack_pair_T(a, g, mt, 2 * p, R, R + 4)
            a('buffer_store_dwordx4 v[%d:%d], v%d, s[20:23], s38 offen offset:%d' % (R, R + 3, voff, 64 * p))
        a('s_add_u32 s38, s38, %d' % (16 * HD * 2))
    a('s_branch %s' % done)
    a.label(lv)
    g = gN
    g.mainloop(a, a.newlabel('Lv'))
    make_srd(a, 20, 10, WS.VT, WS.VT_SZ)
    vt = g.v_tmp
    voff = vt
    a('v_and_b32 v%d, 15, v1' % (vt + 1))
    a('v_lshlrev_b32 v%d, 6, v%d' % (voff, vt + 1))
    a('v_lshrrev_b32 v%d, 4, v1' % (vt + 1))
    a('v_lshl_add_u32 v%d, v%d, 4, v%d' % (voff, vt + 1, voff))
    a('s_lshr_b32 s40, s3, 1')
    a('s_lshl_b32 s40, s40, 2')
    a('s_lshl_b32 s41, s32, 3')
    a('s_add_u32 s40, s40, s41')
    a('s_lshl_b32 s40, s40, 5')
    a('s_and_b32 s41, s3, 1')
    a('s_add_u32 s40, s40, s41')
    a('s_lshl_b32 s41, s36, 1')
    a('s_add_u32 s40, s40, s41')
    a('s_lshl_b32 s38, s40, 13')
    k = 0
    for sg in range(g.TM // 2):
        for nt in range(g.TN):
            R = vt + 4 + 12 * (k % 4); k += 1
            for kk, mt in enumerate((2 * sg, 2 * sg + 1)):
                b = acc_to_v(a, g, mt, nt, R + 4 + 4 * kk)
                a('v_cvt_pk_bf16_f32 v%d, v%d, v%d' % (R + 2 * kk, b, b + 1))
                a('v_cvt_pk_bf16_f32 v%d, v%d, v%d' % (R + 2 * kk + 1, b + 2, b + 3))
            if nt == 4: a('s_add_u32 s38, s38, 4096')
            a('buffer_store_dwordx4 v[%d:%d], v%d, s[20:23], s38 offen offset:%d' % (R, R + 3, voff, 1024 * (nt % 4)))
        a('s_add_u32 s38, s38, %d' % (32 * 8192 - 4096))
    a.label(done)
    a('s_endpgm')
    return finish(name, gT, 384)

def gen_resid(a, name, K, a_off, w_key, res_key, res_off, slot, dst_key, dst_off, BM=128, BN=64):
    nbm, nbn = S // BM, D // BN
    grid = nbm * nbn
    kernel_begin(a, name)
    done = a.newlabel('Lres_done')
    a('s_cmp_ge_u32 s2, %d' % grid)
    a('s_cbranch_scc1 %s' % done)
    load_ptr(a, 4, w_key); load_ptr(a, 10, 'ws')
    if res_key: load_ptr(a, 6, res_key)
    if dst_key: load_ptr(a, 8, dst_key)
    wave_id(a, 3)
    a('s_and_b32 s30, s2, 7')
    a('s_lshr_b32 s31, s2, 3')
    sdivmod(a, 33, 36, 31, nbn, 34)
    a('s_lshl_b32 s33, s33, 3')
    a('s_add_u32 s32, s33, s30')
    a('s_waitcnt lgkmcnt(0)')
    make_srd(a, 12, 10, a_off, S * K * 2)
    make_srd(a, 16, 4, 0, K * D * 2)
    if res_key: make_srd(a, 24, 6, 0, S * D * 2)
    else: make_srd(a, 24, 10, res_off, S * D * 2)
    if dst_key: make_srd(a, 20, 8, 0, S * D * 2)
    else: make_srd(a, 20, 10, dst_off, S * D * 2)
    make_srd(a, 52, 10, WS.MODB + slot * D * 2, D * 2)
    a('s_mul_i32 s46, s32, %d' % (BM * K * 2))
    a('s_mul_i32 s47, s36, %d' % (BN * 2))
    g = Gemm(BM, BN, K, K * 2, D * 2, 'T')
    g.setup(a, 3)
    g.mainloop(a, a.newlabel('Lres'))
    vt = g.v_tmp
    voff, vcol = vt, vt + 1
    lane_T_offsets(a, voff, D * 2, vt + 2)
    lane_col_offsets(a, vcol, vt + 2)
    wave_base(a, g, 38, 32, 36, D * 2, None, 39)
    a('s_lshl_b32 s39, s39, 1')
    assert g.TN % 2 == 0
    G = vt + 4
    for p in range(g.TN // 2):
        a('buffer_load_dwordx4 v[%d:%d], v%d, s[52:55], s39 offen offset:%d' % (G + 8, G + 11, vcol, 64 * p))
        X = G + 12
        a('s_mov_b32 s37, s38')
        for mt in range(g.TM):
            a('buffer_load_dwordx4 v[%d:%d], v%d, s[24:27], s37 offen offset:%d' % (X + 4 * mt, X + 4 * mt + 3, voff, 64 * p))
            a('s_add_u32 s37, s37, %d' % (16 * D * 2))
        a('s_waitcnt vmcnt(%d)' % g.TM)
        for d in range(4): unpack2(a, G + 2 * d, G + 2 * d + 1, G + 8 + d)
        T = X + 4 * g.TM
        a('s_mov_b32 s37, s38')
        for mt in range(g.TM):
            R = T + 24 * (mt % 2)
            pack_pair_T(a, g, mt, 2 * p, R, R + 4)
            V = R + 4
            for d in range(4): unpack2(a, V + 2 * d, V + 2 * d + 1, R + d)
            for j in range(8): a('v_mul_f32 v%d, v%d, v%d' % (V + j, V + j, G + j))
            for d in range(4): round2_bf16(a, V + 2 * d, V + 2 * d + 1, R + 12)
            a('s_waitcnt vmcnt(%d)' % (g.TM - 1))
            for d in range(4):
                unpack2(a, R + 13, R + 14, X + 4 * mt + d)
                a('v_add_f32 v%d, v%d, v%d' % (V + 2 * d, V + 2 * d, R + 13))
                a('v_add_f32 v%d, v%d, v%d' % (V + 2 * d + 1, V + 2 * d + 1, R + 14))
                a('v_cvt_pk_bf16_f32 v%d, v%d, v%d' % (R + d, V + 2 * d, V + 2 * d + 1))
            a('buffer_store_dwordx4 v[%d:%d], v%d, s[20:23], s37 offen offset:%d' % (R, R + 3, voff, 64 * p))
            a('s_add_u32 s37, s37, %d' % (16 * D * 2))
        a('s_nop 1')
    a.label(done)
    a('s_endpgm')
    return finish(name, g, grid)

GC0 = -2.0 * 0.7978845608028654 * LOG2E
GC1 = GC0 * 0.044715
def gelu(a, x, t):
    a('v_mul_f32 v%d, v%d, v%d' % (t, x, x))
    a('v_fma_f32 v%d, v%d, s57, v%d' % (t, t, GELU_C0))
    a('v_mul_f32 v%d, v%d, v%d' % (t, t, x))
    a('v_exp_f32 v%d, v%d' % (t, t))
    a('s_nop 0')
    a('v_add_f32 v%d, 1.0, v%d' % (t, t))
    a('v_rcp_f32 v%d, v%d' % (t, t))
    a('s_nop 0')
    a('v_mul_f32 v%d, v%d, v%d' % (x, x, t))

def gen_win(a, name='win_kernel'):
    global GELU_C0
    BM, BN = 128, 288
    nbm, nbn = S // BM, F // BN
    grid = nbm * nbn
    kernel_begin(a, name)
    done = a.newlabel('Lwin_done')
    a('s_cmp_ge_u32 s2, %d' % grid)
    a('s_cbranch_scc1 %s' % done)
    load_ptr(a, 4, 'w_in'); load_ptr(a, 10, 'ws')
    wave_id(a, 3)
    a('s_and_b32 s30, s2, 7')
    a('s_lshr_b32 s31, s2, 3')
    a('s_and_b32 s36, s31, 1')
    a('s_lshl_b32 s30, s30, 1')
    a('s_add_u32 s36, s36, s30')
    a('s_lshr_b32 s32, s31, 1')
    a('s_waitcnt lgkmcnt(0)')
    make_srd(a, 12, 10, WS.H2, S * D * 2)
    make_srd(a, 16, 4, 0, D * F * 2)
    a('s_cmp_ge_u32 s36, 8')
    a('s_mov_b32 s37, 0x%x' % WS.Z1)
    a('s_cselect_b32 s37, 0x%x, s37' % WS.Z2)
    a('s_add_u32 s20, s10, s37')
    a('s_addc_u32 s21, s11, 0')
    a('s_mov_b32 s22, %d' % (S * FH * 2))
    a('s_mov_b32 s23, 0x20000')
    a('s_mul_i32 s46, s32, %d' % (BM * D * 2))
    a('s_mul_i32 s47, s36, %d' % (BN * 2))
    a('s_and_b32 s35, s36, 7')
    g = Gemm(BM, BN, D, D * 2, F * 2, 'T')
    g.setup(a, 3)
    g.mainloop(a, a.newlabel('Lwin'))
    vt = g.v_tmp
    voff, voff1 = vt, vt + 1
    lane_T_offsets(a, voff, FH * 2, vt + 2)
    a('v_and_b32 v%d, 15, v1' % (vt + 2))
    a('s_mov_b32 s40, %d' % (FH * 2))
    a('v_mul_lo_u32 v%d, v%d, s40' % (voff1, vt + 2))
    a('v_lshrrev_b32 v%d, 4, v1' % (vt + 2))
    a('v_lshl_add_u32 v%d, v%d, 3, v%d' % (voff1, vt + 2, voff1))
    wave_base(a, g, 38, 32, 35, FH * 2)
    GELU_C0 = vt + 3
    a('v_mov_b32 v%d, 0x%x' % (GELU_C0, f2u(GC0)))
    a('s_mov_b32 s57, 0x%x' % f2u(GC1))
    T = vt + 4
    assert g.acc_kind == 'v'
    k = 0
    for mt in range(g.TM):
        for nt in range(g.TN):
            b = g.acc(mt, nt)
            round2_bf16(a, b, b + 1, T); round2_bf16(a, b + 2, b + 3, T)
            for r in range(4): gelu(a, b + r, T + 1 + (r & 1))
        for p in range(g.TN // 2):
            R = T + 4 + 4 * (k % 4); k += 1
            pack_pair_T(a, g, mt, 2 * p, R, None)
            a('buffer_store_dwordx4 v[%d:%d], v%d, s[20:23], s38 offen offset:%d' % (R, R + 3, voff, 64 * p))
        R = T + 4 + 4 * (k % 4); k += 1
        b = g.acc(mt, g.TN - 1)
        a('v_cvt_pk_bf16_f32 v%d, v%d, v%d' % (R, b, b + 1))
        a('v_cvt_pk_bf16_f32 v%d, v%d, v%d' % (R + 1, b + 2, b + 3))
        a('buffer_store_dwordx2 v[%d:%d], v%d, s[20:23], s38 offen offset:%d' % (R, R + 1, voff1, 32 * (g.TN - 1)))
        a('s_add_u32 s38, s38, %d' % (16 * FH * 2))
    a.label(done)
    a('s_endpgm')
    return finish(name, g, grid)

def gen_wsp(a, name='wsp_kernel'):
    BM, BN = 128, 192
    nbm, nbn = S // BM, FH // BN
    grid = nbm * nbn
    kernel_begin(a, name)
    done = a.newlabel('Lwsp_done')
    a('s_cmp_ge_u32 s2, %d' % grid)
    a('s_cbranch_scc1 %s' % done)
    load_ptr(a, 4, 'w_sp'); load_ptr(a, 6, 'b_sp'); load_ptr(a, 10, 'ws')
    wave_id(a, 3)
    a('s_and_b32 s30, s2, 7')
    a('s_lshr_b32 s31, s2, 3')
    sdivmod(a, 33, 36, 31, 12, 34)
    a('s_lshl_b32 s30, s30, 1')
    a('s_add_u32 s32, s30, s33')
    a('s_waitcnt lgkmcnt(0)')
    make_srd(a, 12, 4, 0, S * S * 2)
    make_srd(a, 16, 10, WS.Z2N, S * FH * 2)
    make_srd(a, 20, 10, WS.Y, S * FH * 2)
    make_srd(a, 24, 10, WS.Z1, S * FH * 2)
    make_srd(a, 52, 6, 0, S * 2)
    a('s_mul_i32 s46, s32, %d' % (BM * S * 2))
    a('s_mul_i32 s47, s36, %d' % (BN * 2))
    g = Gemm(BM, BN, S, S * 2, FH * 2, 'T')
    g.setup(a, 3)
    g.mainloop(a, a.newlabel('Lwsp'))
    vt = g.v_tmp
    voff, vrow = vt, vt + 1
    lane_T_offsets(a, voff, FH * 2, vt + 2)
    a('v_and_b32 v%d, 15, v1' % vrow)
    a('v_lshlrev_b32 v%d, 1, v%d' % (vrow, vrow))
    wave_base(a, g, 38, 32, 36, FH * 2, 39, None)
    a('s_lshl_b32 s39, s39, 1')
    T = vt + 4
    NP = g.TN // 2
    for mt in range(g.TM):
        Bv = T
        Z = T + 4
        a('buffer_load_ushort v%d, v%d, s[52:55], s39 offen offset:%d' % (Bv, vrow, 32 * mt))
        for p in range(NP):
            a('buffer_load_dwordx4 v[%d:%d], v%d, s[24:27], s38 offen offset:%d' % (Z + 4 * p, Z + 4 * p + 3, voff, 64 * p))
        a('s_waitcnt vmcnt(%d)' % NP)
        a('v_lshlrev_b32 v%d, 16, v%d' % (Bv, Bv))
        U = Z + 4 * NP
        for p in range(NP):
            R = U + 16 * (p % 2)
            pack_pair_T(a, g, mt, 2 * p, R, None)
            V = R + 4
            for d in range(4): unpack2(a, V + 2 * d, V + 2 * d + 1, R + d)
            for j in range(8): a('v_add_f32 v%d, v%d, v%d' % (V + j, V + j, Bv))
            for d in range(4): round2_bf16(a, V + 2 * d, V + 2 * d + 1, R + 12)
            a('s_waitcnt vmcnt(%d)' % (NP - 1))
            for d in range(4):
                unpack2(a, R + 13, R + 14, Z + 4 * p + d)
                a('v_mul_f32 v%d, v%d, v%d' % (V + 2 * d, V + 2 * d, R + 13))
                a('v_mul_f32 v%d, v%d, v%d' % (V + 2 * d + 1, V + 2 * d + 1, R + 14))
                a('v_cvt_pk_bf16_f32 v%d, v%d, v%d' % (R + d, V + 2 * d, V + 2 * d + 1))
            a('buffer_store_dwordx4 v[%d:%d], v%d, s[20:23], s38 offen offset:%d' % (R, R + 3, voff, 64 * p))
        a('s_add_u32 s38, s38, %d' % (16 * FH * 2))
        a('s_waitcnt vmcnt(0)')
    a.label(done)
    a('s_endpgm')
    return finish(name, g, grid)
```

```python
from asmlib import *

LOG2E = 1.4426950408889634
import struct
def f2u(x): return struct.unpack('<I', struct.pack('<f', x))[0]

def dpp_allreduce16(a, v, op='add'):
    ins = {'add': 'v_add_f32_dpp', 'max': 'v_max_f32_dpp'}[op]
    for r in (8, 4, 2, 1):
        a('s_nop 1')
        a('%s v%d, v%d, v%d row_ror:%d row_mask:0xf bank_mask:0xf' % (ins, v, v, v, r))

def allreduce_rows(a, v, t, op='add'):
    ins = {'add': 'v_add_f32', 'max': 'v_max_f32'}[op]
    for sw in ('v_permlane16_swap_b32', 'v_permlane32_swap_b32'):
        a('v_mov_b32 v%d, v%d' % (t, v))
        a('s_nop 1')
        a('%s v%d, v%d' % (sw, v, t))
        a('s_nop 1')
        a('%s v%d, v%d, v%d' % (ins, v, v, t))

def gen_mod(a, name='mod_kernel'):
    kernel_begin(a, name)
    done = a.newlabel('Lmod_done')
    a('s_cmp_ge_u32 s2, 108')
    a('s_cbranch_scc1 %s' % done)
    load_ptr(a, 4, 'c'); load_ptr(a, 6, 'w_mod'); load_ptr(a, 8, 'ws')
    a('s_waitcnt lgkmcnt(0)')
    make_srd(a, 12, 4, 0, D * 2)
    make_srd(a, 16, 6, 0, D * 6 * D * 2)
    make_srd(a, 20, 8, WS.MODB, WS.MODB_SZ)
    a('v_and_b32 v1, 3, v0')
    a('v_lshrrev_b32 v2, 2, v0')
    a('v_mul_u32_u24 v3, 18, v2')
    a('s_mov_b32 s24, %d' % (9 * 6912))
    a('v_mul_lo_u32 v4, v2, s24')
    a('s_lshl_b32 s25, s2, 6')
    a('v_lshlrev_b32 v5, 4, v1')
    a('v_add3_u32 v4, v4, v5, s25')
    for i in range(9):
        a('buffer_load_ushort v%d, v3, s[12:15], 0 offen offset:%d' % (10 + i, 2 * i))
    for i in range(9):
        a('s_mov_b32 s26, %d' % (i * 6912))
        a('buffer_load_dwordx4 v[%d:%d], v4, s[16:19], s26 offen' % (20 + 4 * i, 23 + 4 * i))
    for j in range(8):
        a('v_mov_b32 v%d, 0' % (60 + j))
    a('s_mov_b32 s27, 0x%x' % f2u(-LOG2E))
    a('s_waitcnt vmcnt(9)')
    for i in range(9):
        v = 10 + i
        a('v_lshlrev_b32 v%d, 16, v%d' % (v, v))
        a('v_mul_f32 v8, s27, v%d' % v)
        a('v_exp_f32 v8, v8')
        a('s_nop 0')
        a('v_add_f32 v8, 1.0, v8')
        a('v_rcp_f32 v8, v8')
        a('s_nop 0')
        a('v_mul_f32 v%d, v%d, v8' % (v, v))
        round_bf16(a, v, 8)
    for i in range(9):
        a('s_waitcnt vmcnt(%d)' % (8 - i))
        for d in range(4):
            src = 20 + 4 * i + d
            unpack2(a, 8, 9, src)
            a('v_fmac_f32 v%d, v%d, v8' % (60 + 2 * d, 10 + i))
            a('v_fmac_f32 v%d, v%d, v9' % (61 + 2 * d, 10 + i))
    for r in (4, 8):
        a('s_nop 1')
        for j in range(8):
            a('v_add_f32_dpp v%d, v%d, v%d row_ror:%d row_mask:0xf bank_mask:0xf' % (60 + j, 60 + j, 60 + j, r))
    a('v_lshrrev_b32 v6, 4, v0')
    a('v_lshlrev_b32 v6, 7, v6')
    a('v_lshl_add_u32 v6, v1, 5, v6')
    a('v_and_b32 v7, 12, v0')
    a('v_cmp_eq_u32 vcc, 0, v7')
    a('s_and_saveexec_b64 s[28:29], vcc')
    a('ds_write_b128 v6, v[60:63]')
    a('ds_write_b128 v6, v[64:67] offset:16')
    a('s_mov_b64 exec, s[28:29]')
    a('s_waitcnt lgkmcnt(0)')
    a('s_barrier')
    a('v_cmp_gt_u32 vcc, 32, v0')
    a('s_and_saveexec_b64 s[28:29], vcc')
    a('s_cbranch_execz %s' % done)
    a('v_lshlrev_b32 v6, 2, v0')
    for i in range(16):
        a('ds_read_b32 v%d, v6 offset:%d' % (20 + i, 128 * i))
    a('s_waitcnt lgkmcnt(0)')
    for i in range(1, 16):
        a('v_add_f32 v20, v20, v%d' % (20 + i))
    round_bf16(a, 20, 8)
    skip = a.newlabel('Lmod_skip')
    one = a.newlabel('Lmod_one')
    a('s_cmp_ge_u32 s2, 90')
    a('s_cbranch_scc1 %s' % skip)
    a('s_cmp_ge_u32 s2, 72')
    a('s_cbranch_scc1 %s' % one)
    a('s_cmp_ge_u32 s2, 36')
    a('s_cbranch_scc1 %s' % skip)
    a('s_cmp_lt_u32 s2, 18')
    a('s_cbranch_scc1 %s' % skip)
    a.label(one)
    a('v_add_f32 v20, 1.0, v20')
    a.label(skip)
    a('v_cvt_pk_bf16_f32 v20, v20, v20')
    a('v_lshlrev_b32 v6, 1, v0')
    a('v_add_u32 v6, s25, v6')
    a('buffer_store_short v20, v6, s[20:23], 0 offen')
    a.label(done)
    a('s_endpgm')
    return kernel_desc(name, 72, 40), '; @launch kernel=%s grid=(108,1,1) block=(256,1,1) lds=2048' % name

def gen_ln(a, name, src_key, src_off, dst_off, slot_shift, slot_scale):
    kernel_begin(a, name)
    done = a.newlabel('Lln_done')
    a('s_cmp_ge_u32 s2, 128')
    a('s_cbranch_scc1 %s' % done)
    load_ptr(a, 8, 'ws')
    if src_off is None: load_ptr(a, 4, src_key)
    a('s_waitcnt lgkmcnt(0)')
    if src_off is None: make_srd(a, 12, 4, 0, S * D * 2)
    else: make_srd(a, 12, 8, src_off, S * D * 2)
    make_srd(a, 16, 8, dst_off, S * D * 2)
    make_srd(a, 20, 8, WS.MODB, WS.MODB_SZ)
    ln_body(a, 's2', slot_shift, slot_scale)
    a.label(done)
    a('s_endpgm')
    return kernel_desc(name, 128, 40), '; @launch kernel=%s grid=(128,1,1) block=(256,1,1) lds=0' % name

def ln_body(a, sblk, slot_shift, slot_scale):
    a('v_and_b32 v1, 15, v0')
    a('v_lshrrev_b32 v2, 4, v0')
    a('s_lshl_b32 s24, %s, 4' % sblk)
    a('v_add_u32 v2, s24, v2')
    a('s_movk_i32 s25, %d' % (D * 2))
    a('v_mul_lo_u32 v2, v2, s25')
    a('v_lshl_add_u32 v3, v1, 4, v2')
    a('v_lshlrev_b32 v4, 4, v1')
    a('v_cmp_gt_u32 vcc, 8, v1')
    a('v_mov_b32 v5, 0x7ffffff0')
    a('s_nop 0')
    a('v_cndmask_b32 v6, v5, v3, vcc')
    a('v_cndmask_b32 v7, v5, v4, vcc')
    a('v_cndmask_b32 v9, 0, 1.0, vcc')
    X = 12
    for i in range(4):
        a('buffer_load_dwordx4 v[%d:%d], v3, s[12:15], 0 offen offset:%d' % (X + 4 * i, X + 4 * i + 3, 256 * i))
    a('buffer_load_dwordx4 v[%d:%d], v6, s[12:15], 0 offen offset:1024' % (X + 16, X + 19))
    SC, SH = 32, 52
    for (base, slot) in ((SC, slot_scale), (SH, slot_shift)):
        a('s_mov_b32 s26, %d' % (slot * D * 2))
        for i in range(4):
            a('buffer_load_dwordx4 v[%d:%d], v4, s[20:23], s26 offen offset:%d' % (base + 4 * i, base + 4 * i + 3, 256 * i))
        a('buffer_load_dwordx4 v[%d:%d], v7, s[20:23], s26 offen offset:1024' % (base + 16, base + 19))
    Fv = 72
    a('s_waitcnt vmcnt(10)')
    for i in range(20):
        unpack2(a, Fv + 2 * i, Fv + 2 * i + 1, X + i)
    a('v_add_f32 v8, v%d, v%d' % (Fv, Fv + 1))
    for i in range(2, 40):
        a('v_add_f32 v8, v8, v%d' % (Fv + i))
    dpp_allreduce16(a, 8)
    a('s_mov_b32 s27, 0x%x' % f2u(1.0 / D))
    a('v_mul_f32 v8, s27, v8')
    a('v_mov_b32 v10, 0')
    a('v_mov_b32 v112, 0')
    for i in range(40):
        a('v_sub_f32 v11, v%d, v8' % (Fv + i))
        a('v_fmac_f32 v%d, v11, v11' % (10 if i < 32 else 112))
    a('v_fmac_f32 v10, v112, v9')
    dpp_allreduce16(a, 10)
    a('v_mul_f32 v10, s27, v10')
    round_bf16(a, 10, 11)
    round_bf16(a, 8, 11)
    a('v_add_f32 v10, 0x%x, v10' % f2u(1e-5))
    round_bf16(a, 10, 11)
    a('v_sqrt_f32 v10, v10')
    a('s_nop 0')
    round_bf16(a, 10, 11)
    a('v_rcp_f32 v10, v10')
    a('s_waitcnt vmcnt(0)')
    for i in range(20):
        x0, x1 = Fv + 2 * i, Fv + 2 * i + 1
        a('v_sub_f32 v%d, v%d, v8' % (x0, x0))
        a('v_sub_f32 v%d, v%d, v8' % (x1, x1))
        round2_bf16(a, x0, x1, 11)
        a('v_mul_f32 v%d, v%d, v10' % (x0, x0))
        a('v_mul_f32 v%d, v%d, v10' % (x1, x1))
        round2_bf16(a, x0, x1, 11)
        unpack2(a, 113, 114, SC + i)
        a('v_mul_f32 v%d, v%d, v113' % (x0, x0))
        a('v_mul_f32 v%d, v%d, v114' % (x1, x1))
        round2_bf16(a, x0, x1, 11)
        unpack2(a, 113, 114, SH + i)
        a('v_add_f32 v%d, v%d, v113' % (x0, x0))
        a('v_add_f32 v%d, v%d, v114' % (x1, x1))
        a('v_cvt_pk_bf16_f32 v%d, v%d, v%d' % (X + i, x0, x1))
    for i in range(4):
        a('buffer_store_dwordx4 v[%d:%d], v3, s[16:19], 0 offen offset:%d' % (X + 4 * i, X + 4 * i + 3, 256 * i))
    a('buffer_store_dwordx4 v[%d:%d], v6, s[16:19], 0 offen offset:1024' % (X + 16, X + 19))

def gen_lnz(a, name='lnz_kernel'):
    kernel_begin(a, name)
    done = a.newlabel('Llnz_done')
    a('s_cmp_ge_u32 s2, 512')
    a('s_cbranch_scc1 %s' % done)
    load_ptr(a, 8, 'ws')
    a('s_waitcnt lgkmcnt(0)')
    make_srd(a, 12, 8, WS.Z2, S * FH * 2)
    make_srd(a, 16, 8, WS.Z2N, S * FH * 2)
    a('v_and_b32 v1, 63, v0')
    a('v_lshrrev_b32 v2, 6, v0')
    a('s_lshl_b32 s24, s2, 2')
    a('v_add_u32 v2, s24, v2')
    a('s_movk_i32 s25, %d' % (FH * 2))
    a('v_mul_lo_u32 v2, v2, s25')
    a('v_lshl_add_u32 v3, v1, 4, v2')
    a('v_cmp_gt_u32 vcc, 32, v1')
    a('v_mov_b32 v5, 0x7ffffff0')
    a('v_add_u32 v4, 4096, v3')
    a('v_cndmask_b32 v6, v5, v4, vcc')
    a('v_cndmask_b32 v9, 0, 1.0, vcc')
    X = 12
    for i in range(4):
        a('buffer_load_dwordx4 v[%d:%d], v3, s[12:15], 0 offen offset:%d' % (X + 4 * i, X + 4 * i + 3, 1024 * i))
    a('buffer_load_dwordx4 v[%d:%d], v6, s[12:15], 0 offen' % (X + 16, X + 19))
    Fv = 72
    a('s_waitcnt vmcnt(0)')
    for i in range(20):
        unpack2(a, Fv + 2 * i, Fv + 2 * i + 1, X + i)
    a('v_add_f32 v8, v%d, v%d' % (Fv, Fv + 1))
    for i in range(2, 40):
        a('v_add_f32 v8, v8, v%d' % (Fv + i))
    dpp_allreduce16(a, 8)
    allreduce_rows(a, 8, 11)
    a('s_mov_b32 s27, 0x%x' % f2u(1.0 / FH))
    a('v_mul_f32 v8, s27, v8')
    a('v_mov_b32 v10, 0')
    a('v_mov_b32 v112, 0')
    for i in range(40):
        a('v_sub_f32 v11, v%d, v8' % (Fv + i))
        a('v_fmac_f32 v%d, v11, v11' % (10 if i < 32 else 112))
    a('v_fmac_f32 v10, v112, v9')
    dpp_allreduce16(a, 10)
    allreduce_rows(a, 10, 11)
    a('v_mul_f32 v10, s27, v10')
    round_bf16(a, 10, 11)
    round_bf16(a, 8, 11)
    a('v_add_f32 v10, 0x%x, v10' % f2u(1e-5))
    round_bf16(a, 10, 11)
    a('v_sqrt_f32 v10, v10')
    a('s_nop 0')
    round_bf16(a, 10, 11)
    a('v_rcp_f32 v10, v10')
    a('s_nop 0')
    for i in range(20):
        x0, x1 = Fv + 2 * i, Fv + 2 * i + 1
        a('v_sub_f32 v%d, v%d, v8' % (x0, x0))
        a('v_sub_f32 v%d, v%d, v8' % (x1, x1))
        round2_bf16(a, x0, x1, 11)
        a('v_mul_f32 v%d, v%d, v10' % (x0, x0))
        a('v_mul_f32 v%d, v%d, v10' % (x1, x1))
        a('v_cvt_pk_bf16_f32 v%d, v%d, v%d' % (X + i, x0, x1))
    for i in range(4):
        a('buffer_store_dwordx4 v[%d:%d], v3, s[16:19], 0 offen offset:%d' % (X + 4 * i, X + 4 * i + 3, 1024 * i))
    a('buffer_store_dwordx4 v[%d:%d], v6, s[16:19], 0 offen' % (X + 16, X + 19))
    a.label(done)
    a('s_endpgm')
    return kernel_desc(name, 128, 40), '; @launch kernel=%s grid=(512,1,1) block=(256,1,1) lds=0' % name
```

```python
import sys
from asmlib import *
import k_small, k_gemms

def build(stages):
    a = Asm()
    descs, launches = [], []
    def add(r):
        descs.append(r[0]); launches.append(r[1])
    a.raw('.amdgcn_target "amdgcn-amd-amdhsa--gfx950"')
    for st in stages:
        if st == 'mod': add(k_small.gen_mod(a))
        elif st == 'ln1': add(k_small.gen_ln(a, 'ln1_kernel', 'x', None, WS.H1, 0, 1))
        elif st == 'qkv': add(k_gemms.gen_qkv(a))
        elif st == 'chain':
            import k_chain; add(k_chain.gen_chain(a))
        elif st == 'attn':
            import k_attn; add(k_attn.gen_attn(a))
        elif st == 'wo': add(k_gemms.gen_resid(a, 'wo_kernel', HD, WS.O, 'wo', 'x', None, 2, None, WS.X1))
        elif st == 'ln2': add(k_small.gen_ln(a, 'ln2_kernel', None, WS.X1, WS.H2, 3, 4))
        elif st == 'win': add(k_gemms.gen_win(a))
        elif st == 'lnz': add(k_small.gen_lnz(a))
        elif st == 'wsp': add(k_gemms.gen_wsp(a))
        elif st == 'wout': add(k_gemms.gen_resid(a, 'wout_kernel', FH, WS.Y, 'w_out', None, WS.X1, 5, 'out', None))
        else: raise ValueError(st)
    ref = open('cdna_kernels/%s.s.ref' % KNAME).read().split('\n')
    hdr = []
    for ln in ref:
        if ln.startswith(';') and '@launch' not in ln and 'Override launch' not in ln and 'grid=ceil' not in ln: hdr.append(ln)
        elif not ln.startswith(';'): break
    out = '\n'.join(hdr) + '\n' + '\n'.join(launches) + '\n' + a.text() + '\n'.join(descs)
    return out

ALL = ['mod', 'ln1', 'qkv', 'chain', 'attn', 'wo', 'ln2', 'win', 'lnz', 'wsp', 'wout']
if __name__ == '__main__':
    outp = sys.argv[1]
    stages = sys.argv[2].split(',') if len(sys.argv) > 2 else ALL
    open(outp, 'w').write(build(stages))
    print('wrote', outp)
```
